```python
import torch

def _softmax(x, axis=-1):
    return torch.softmax(x, dim=axis)
def _gelu(x):
    return torch.nn.functional.gelu(x, approximate="tanh")
def _silu(x):
    return torch.nn.functional.silu(x)
def _sigmoid(x):
    return torch.sigmoid(x)
def _layernorm(x, axis=-1, eps=1e-5):
    m = x.mean(dim=axis, keepdim=True)
    v = x.var(dim=axis, keepdim=True, unbiased=False)
    return (x - m) / torch.sqrt(v + eps)
def _scatter_add(tgt, idx, src, axis=0):
    return tgt.clone().index_add_(axis, idx, src)
def _segment_sum(src, seg, n):
    out = torch.zeros((n,) + src.shape[1:], dtype=src.dtype)
    return out.index_add_(0, seg, src)
def _pad(x, pw):
    flat = tuple(v for pair in reversed(pw) for v in pair)
    return torch.nn.functional.pad(x, flat)

kernel_name = 'sequential_preLN__softmax_full_mha__dense_activation_relu__prompt'

def setup_inputs():

    _w = (lambda a: (lambda t: t.to(torch.bfloat16) if t.is_floating_point() else t)(torch.as_tensor(a)))
    def _A_setup():
        B, S, D = 1, 2048, 640
        return {
            "x": _w((lambda *s: torch.randn(*s, dtype=torch.bfloat16) * 0.05)(B, S, D)),
            "wqkv": _w((lambda *s: torch.randn(*s, dtype=torch.bfloat16) * 0.05)(D, 3 * D)),
            "wo": _w((lambda *s: torch.randn(*s, dtype=torch.bfloat16) * 0.05)(D, D)),
        }
    _A_in = _A_setup()

    def _B_setup():
        B, S, D, Dff = 1, 2048, 640, 1728
        return {
            "x": _w((lambda *s: torch.randn(*s, dtype=torch.bfloat16) * 0.05)(B, S, D)),
            "w1": _w((lambda *s: torch.randn(*s, dtype=torch.bfloat16) * 0.05)(D, Dff)),
            "w2": _w((lambda *s: torch.randn(*s, dtype=torch.bfloat16) * 0.05)(Dff, D)),
        }
    _B_in = _B_setup()

    return {
        "A_x": _A_in["x"],
        "A_wqkv": _A_in["wqkv"],
        "A_wo": _A_in["wo"],
        "B_x": _B_in["x"],
        "B_w1": _B_in["w1"],
        "B_w2": _B_in["w2"],
    }

def reference(A_x, A_wqkv, A_wo, B_x, B_w1, B_w2):
    def _A_ref(x, wqkv, wo):
        B, S, D = x.shape
        H = 32; Dh = D // H
        qkv = (lambda x, *d: x.permute(*d))((x @ wqkv).reshape(B, S, 3, H, Dh), 2, 0, 3, 1, 4)
        q, k, v = qkv[0], qkv[1], qkv[2]
        scale = Dh ** -0.5
        scores = torch.einsum("bhqd,bhkd->bhqk", q, k) * scale
        p = _softmax(scores, axis=-1)
        o = torch.einsum("bhqk,bhkd->bhqd", p, v)
        return (lambda x, *d: x.permute(*d))(o, 0, 2, 1, 3).reshape(B, S, D) @ wo

    def _B_ref(x, w1, w2):
        h = torch.einsum("bsd,df->bsf", x, w1)
        zero = torch.zeros_like(h)
        h = torch.maximum(h, zero)
        return torch.einsum("bsf,fd->bsd", h, w2)

    x = A_x
    h = x + _A_ref(_layernorm(x, axis=-1), A_wqkv, A_wo)
    h2 = h + _B_ref(_layernorm(h, axis=-1), B_w1, B_w2)
    return h2
```

```python
import re

class Asm:
    def __init__(self):
        self.lines = []
        self._lab = 0
    def __call__(self, text):
        for ln in text.split("\n"):
            ln = ln.strip()
            if ln:
                self.lines.append(ln)
    def c(self, text):
        self.lines.append("; " + text)
    def label(self, name):
        self.lines.append(name + ":")
    _glab = [0]
    def newlabel(self, base="L"):
        Asm._glab[0] += 1
        return f"{base}_{Asm._glab[0]}"
    def raw(self, text):
        self.lines.append("\x00" + text)

def vr(base, n=1):
    return f"v{base}" if n == 1 else f"v[{base}:{base+n-1}]"
def sr(base, n=1):
    return f"s{base}" if n == 1 else f"s[{base}:{base+n-1}]"
def ar(base, n=1):
    return f"a{base}" if n == 1 else f"a[{base}:{base+n-1}]"

_REG = re.compile(r"^(-|abs\(|\|)?([vsa])(\d+|\[(\d+):(\d+)\])(\)|\|)?$")
def parse_reg(tok):
    tok = tok.strip()
    if tok in ("vcc",): return [("s", "vcc_lo"), ("s", "vcc_hi")]
    if tok == "vcc_lo": return [("s", "vcc_lo")]
    if tok == "vcc_hi": return [("s", "vcc_hi")]
    if tok == "exec": return [("s", "exec_lo"), ("s", "exec_hi")]
    if tok == "exec_lo": return [("s", "exec_lo")]
    if tok == "exec_hi": return [("s", "exec_hi")]
    if tok == "m0": return [("s", "m0")]
    m = _REG.match(tok)
    if not m: return []
    kind = m.group(2)
    if m.group(4) is not None:
        lo, hi = int(m.group(4)), int(m.group(5))
    else:
        lo = hi = int(m.group(3))
    return [(kind, i) for i in range(lo, hi+1)]

TRANS = ("v_exp_f32", "v_log_f32", "v_rcp_f32", "v_rsq_f32", "v_sqrt_f32", "v_sin_f32", "v_cos_f32", "v_exp_f16", "v_rcp_iflag_f32", "v_rcp_f16", "v_rsq_f16", "v_sqrt_f16", "v_log_f16")
MFMA_PASS = {
    "v_mfma_f32_32x32x16_bf16": 8, "v_mfma_f32_32x32x8_bf16": 8, "v_mfma_f32_32x32x8_bf16_1k": 8,
    "v_mfma_f32_16x16x32_bf16": 4, "v_mfma_f32_16x16x16_bf16": 4, "v_mfma_f32_16x16x16_bf16_1k": 4,
    "v_mfma_f32_32x32x4_2b_bf16": 16, "v_mfma_f32_4x4x4_16b_bf16": 2,
}

class Ins:
    __slots__ = ("text", "op", "ops", "mods", "wr", "rd", "cls", "label", "target", "srcC", "srcAB", "dlist", "is_dpp", "is_sdwa", "store_data", "uncond")
    def __init__(self, text):
        self.text = text
        self.label = None; self.target = None; self.uncond = False
        self.wr = set(); self.rd = set(); self.cls = "other"
        self.srcC = []; self.srcAB = set(); self.dlist = []
        self.is_dpp = False; self.is_sdwa = False; self.store_data = set()
        t = text.split(";")[0].split("//")[0].strip()
        if t.endswith(":"):
            self.label = t[:-1]; self.op = None; self.cls = "label"; return
        parts = t.split(None, 1)
        self.op = op = parts[0]
        rest = parts[1] if len(parts) > 1 else ""
        toks = []; depth = 0; cur = ""
        for ch in rest:
            if ch in "[(": depth += 1
            if ch in "])": depth -= 1
            if ch == "," and depth == 0:
                toks.append(cur.strip()); cur = ""
            else:
                cur += ch
        if cur.strip(): toks.append(cur.strip())
        mods = ""
        if toks:
            last = toks[-1].split(None, 1)
            toks[-1] = last[0]
            if len(last) > 1: mods = last[1]
        self.ops = toks; self.mods = mods
        mo = re.search(r"\boffset:(-?\d+)", mods)
        if mo:
            ov = int(mo.group(1))
            if op.startswith("buffer_"): assert 0 <= ov <= 4095, "MUBUF offset out of range: " + text
            elif op.startswith("ds_") and "swizzle" not in op: assert 0 <= ov <= 65535, "DS offset out of range: " + text
            elif op.startswith("global_"): assert -4096 <= ov <= 4095, "global offset out of range: " + text
        R = [parse_reg(x) for x in toks]
        def W(i): self.wr.update(R[i])
        def Rd(i):
            if i < len(R): self.rd.update(R[i])
        base = re.sub(r"_(e32|e64|dpp|sdwa)$", "", op)
        self.is_dpp = op.endswith("_dpp") or "row_" in mods or "quad_perm" in mods or "row_bcast" in mods or "wave_" in mods
        self.is_sdwa = op.endswith("_sdwa") or "dst_sel" in mods or "op_sel" in mods
        if op.startswith("v_mfma"):
            self.cls = "mfma"
            W(0); Rd(1); Rd(2); Rd(3)
            self.dlist = R[0]; self.srcC = R[3] if len(R) > 3 else []
            self.srcAB = set(R[1]) | set(R[2])
        elif op.startswith("v_"):
            self.cls = "trans" if base in TRANS else "valu"
            if base.startswith("v_cmpx"):
                W(0); self.wr.update(parse_reg("exec")); [Rd(i) for i in range(1, len(R))]
            elif base.startswith("v_cmp"):
                W(0); [Rd(i) for i in range(1, len(R))]
            elif base in ("v_add_co_u32", "v_sub_co_u32", "v_subrev_co_u32"):
                W(0); W(1); [Rd(i) for i in range(2, len(R))]
            elif base in ("v_addc_co_u32", "v_subb_co_u32", "v_subbrev_co_u32"):
                W(0); W(1); [Rd(i) for i in range(2, len(R))]
            elif base in ("v_permlane32_swap_b32", "v_permlane16_swap_b32", "v_swap_b32"):
                W(0); W(1); Rd(0); Rd(1)
            elif base in ("v_fmac_f32", "v_dot2c_f32_bf16", "v_pk_fmac_f16", "v_fmac_f16", "v_writelane_b32", "v_mac_f32"):
                W(0); [Rd(i) for i in range(0, len(R))]
            elif base == "v_nop":
                pass
            else:
                W(0); [Rd(i) for i in range(1, len(R))]
                if base == "v_cndmask_b32" and len(R) == 3:
                    self.rd.update(parse_reg("vcc"))
                if "UNUSED_PRESERVE" in mods or (self.is_dpp):
                    Rd(0)
            self.rd.update(parse_reg("exec"))
        elif op.startswith("ds_"):
            self.cls = "ds"
            if op.startswith("ds_read") or op.startswith("ds_bpermute") or op.startswith("ds_permute") or op.startswith("ds_swizzle") or "_rtn" in op:
                W(0); [Rd(i) for i in range(1, len(R))]
            else:
                [Rd(i) for i in range(0, len(R))]
        elif op.startswith("buffer_"):
            self.cls = "vmem"
            islds = re.search(r"\blds\b", mods) is not None
            if op.startswith("buffer_load"):
                if islds:
                    [Rd(i) for i in range(0, len(R))]; self.rd.add(("s", "m0")); self.cls = "vmem_lds"
                else:
                    W(0); [Rd(i) for i in range(1, len(R))]
            elif op.startswith("buffer_store"):
                [Rd(i) for i in range(0, len(R))]
                if op.endswith("x3") or op.endswith("x4"): self.store_data = set(R[0])
            elif op.startswith("buffer_atomic"):
                [Rd(i) for i in range(0, len(R))]
                if "sc0" in mods: W(0)
        elif op.startswith("global_"):
            self.cls = "vmem"
            if op.startswith("global_load_lds"):
                [Rd(i) for i in range(0, len(R))]; self.rd.add(("s", "m0")); self.cls = "vmem_lds"
            elif op.startswith("global_load"):
                W(0); [Rd(i) for i in range(1, len(R))]
            elif op.startswith("global_store"):
                [Rd(i) for i in range(0, len(R))]
                if op.endswith("x3") or op.endswith("x4"): self.store_data = set(R[1])
            else:
                [Rd(i) for i in range(0, len(R))]
        elif op.startswith("s_"):
            self.cls = "salu"
            if op in ("s_branch",):
                self.target = toks[0]; self.uncond = True; self.cls = "branch"
            elif op.startswith("s_cbranch"):
                self.target = toks[0]; self.cls = "branch"
            elif op == "s_endpgm":
                self.uncond = True; self.cls = "end"
            elif op == "s_nop":
                self.cls = "nop"
            elif op.startswith("s_cmp") or op in ("s_waitcnt", "s_barrier", "s_setprio", "s_sleep", "s_bitcmp0_b32", "s_bitcmp1_b32"):
                [Rd(i) for i in range(0, len(R))]
            elif op.startswith("s_load") or op.startswith("s_buffer_load") or op in ("s_memtime", "s_memrealtime"):
                W(0); [Rd(i) for i in range(1, len(R))]; self.cls = "smem"
            elif "saveexec" in op:
                W(0); self.wr.update(parse_reg("exec")); [Rd(i) for i in range(1, len(R))]
            else:
                W(0); [Rd(i) for i in range(1, len(R))]
        else:
            raise ValueError("unknown instruction: " + text)
    def states(self):
        if self.cls == "label": return 0
        if self.cls == "nop": return int(self.ops[0], 0) + 1
        return 1

def is_v(r): return r[0] in ("v", "a")

def required(p, c):
    need = 0
    pv = {r for r in p.wr if is_v(r)}
    ps = {r for r in p.wr if r[0] == "s"}
    if p.cls in ("valu", "trans"):
        if c.cls == "mfma" and pv & c.rd: need = max(need, 2)
        if p.cls == "trans" and c.cls in ("valu", "mfma", "ds", "vmem", "vmem_lds") and (pv & c.rd): need = max(need, 1)
        if c.cls in ("valu", "trans"):
            if c.is_dpp and pv & c.rd: need = max(need, 2)
            if c.op.startswith("v_permlane") and pv & c.rd: need = max(need, 2)
            if (c.op.startswith("v_readlane") or c.op.startswith("v_readfirstlane")) and pv & c.rd: need = max(need, 1)
            if p.is_sdwa and pv & (c.rd | c.wr): need = max(need, 1)
            sg = (ps - set(parse_reg("exec"))) & c.rd
            if sg:
                need = max(need, 4 if (c.op.startswith("v_readlane") or c.op.startswith("v_writelane") or c.op.startswith("v_div_fmas")) else 2)
            if ps & set(parse_reg("exec")):
                if c.is_dpp: need = max(need, 5)
                if c.op.startswith("v_readlane") or c.op.startswith("v_readfirstlane") or c.op.startswith("v_writelane") or c.op.startswith("v_permlane"): need = max(need, 4)
        if c.cls in ("vmem", "vmem_lds") and (ps & c.rd): need = max(need, 5)
        if c.cls == "mfma" and ps & set(parse_reg("exec")): need = max(need, 4)
    if p.cls == "mfma":
        n = MFMA_PASS[p.op]
        D = set(p.dlist)
        if c.cls == "mfma":
            if D & set(c.srcC):
                same = (c.srcC == p.dlist and MFMA_PASS[c.op] == n)
                if not same: need = max(need, n + 2)
                elif n == 2: need = max(need, 2)
            if D & c.srcAB: need = max(need, n + 4 if n > 2 else 5)
            if D & set(c.dlist) and not (c.dlist == p.dlist): need = max(need, n + 2)
        elif c.cls in ("valu", "trans", "ds", "vmem", "vmem_lds"):
            if D & (c.rd | c.wr): need = max(need, n + 4 if n > 2 else 5)
        if c.cls in ("valu", "trans") and set(p.srcC) & c.wr and not (D & c.wr):
            need = max(need, n - 1 if n > 2 else 1)
    if p.cls == "salu" and ("s", "m0") in p.wr and c.cls == "vmem_lds": need = max(need, 1)
    if p.store_data:
        if c.cls in ("valu", "trans", "mfma") and p.store_data & c.wr: need = max(need, 2)
        elif p.store_data & c.wr: need = max(need, 1)
    return need

MAXW = 20
def fix_hazards(lines, verbose=False):
    lines = list(lines)
    total_inserted = 0
    for it in range(200):
        ins = []
        idxmap = []
        for i, ln in enumerate(lines):
            if ln.startswith("\x00") or ln.startswith(";") or ln.startswith("."):
                continue
            ins.append(Ins(ln)); idxmap.append(i)
        labels = {x.label: k for k, x in enumerate(ins) if x.label}
        def succ(k):
            x = ins[k]
            out = []
            if x.target is not None:
                if x.target in labels: out.append(labels[x.target])
            if not x.uncond and k + 1 < len(ins): out.append(k + 1)
            return out
        fixes = {}
        for k, p in enumerate(ins):
            if p.cls not in ("valu", "trans", "mfma", "salu", "vmem") : continue
            if p.cls == "salu" and ("s", "m0") not in p.wr: continue
            if p.cls == "vmem" and not p.store_data: continue
            lim = MAXW if p.cls == "mfma" else 5
            best = {}
            stack = [(s, 0) for s in succ(k)]
            while stack:
                j, d = stack.pop()
                if d >= lim: continue
                if j in best and best[j] <= d: continue
                best[j] = d
                c = ins[j]
                if c.cls != "label":
                    need = required(p, c)
                    if need > d:
                        fixes[j] = max(fixes.get(j, 0), need - d)
                for s in succ(j):
                    stack.append((s, d + c.states()))
        if not fixes: break
        js = sorted(fixes)
        applied = []
        last = -1000
        for j in js:
            if j - last > MAXW + 2:
                applied.append(j); last = j
        for j in sorted(applied, reverse=True):
            n = fixes[j]
            nop = []
            while n > 0:
                t = min(n, 16); nop.append(f"s_nop {t-1}"); n -= t
            if verbose: print(f"hazard: {fixes[j]} states before: {ins[j].text}")
            total_inserted += 1
            lines[idxmap[j]:idxmap[j]] = nop
    else:
        raise RuntimeError("hazard fixing did not converge")
    return lines, total_inserted

def render(lines):
    out = []
    for ln in lines:
        if ln.startswith("\x00"): out.append(ln[1:])
        elif ln.endswith(":") and not ln.startswith(";"): out.append(ln)
        else: out.append("  " + ln)
    return "\n".join(out) + "\n"
```

```python
from asmfw import *

WS_EPOCH = 0
WS_FLAGS = 4096
WS_QF    = 4096 + 4*256*128
QREC = 1280
WS_KV    = WS_QF + 32*64*QREC
KVREC = 2688
WS_KMAX  = WS_KV + 32*64*KVREC + 4096
WS_LNS   = WS_KMAX + 32*5*64*4
WS_OF    = WS_LNS + 2048*16
WS_HF    = WS_OF + 32*20*4*1024
WS_ST    = WS_HF + 32*40*2*1024
WS_H1    = WS_ST + 32*16*64*8
WS_END   = WS_H1 + 32*54*4*1024
assert WS_QF % 128 == 0 and WS_KV % 128 == 0 and WS_KMAX % 128 == 0 and WS_OF % 128 == 0 and WS_HF % 128 == 0 and WS_H1 % 128 == 0

KV_KB = 1024; KV_KC = 1280; KV_V = 1296; KV_ONES = 2576; KV_ZERO = 2592

QSCALE = (20 ** -0.5) * 1.4426950408889634
import struct
def f32bits(x): return struct.unpack("<I", struct.pack("<f", x))[0]

S_WS, S_X, S_WQKV, S_WO, S_W1, S_W2, S_OUT = 4, 8, 12, 16, 20, 24, 28
S_W, S_XCD, S_IDX, S_TAG = 32, 33, 34, 35
SPIN_MAX = 1 << 20
S_PTR = 64

def prologue(a, endlabel):
    a(f"""
    s_cmp_ge_u32 s2, 256
    s_cbranch_scc1 {endlabel}
    s_load_dwordx16 s[64:79], s[0:1], 0
    s_load_dwordx2 s[80:81], s[0:1], 64
    v_lshrrev_b32 v2, 6, v0
    v_and_b32 v1, 63, v0
    s_and_b32 s{S_XCD}, s2, 7
    v_readfirstlane_b32 s{S_W}, v2
    s_lshr_b32 s{S_IDX}, s2, 3
    s_waitcnt lgkmcnt(0)
    """)
    def srd(d, p, size):
        a(f"""
        s_mov_b32 s{d}, s{p}
        s_and_b32 s{d+1}, s{p+1}, 0xffff
        s_mov_b32 s{d+2}, {size}
        s_mov_b32 s{d+3}, 0x20000
        """)
    srd(S_WS, 80, WS_END)
    srd(S_X, 64, 2048*640*2)
    srd(S_WQKV, 66, 640*1920*2)
    srd(S_WO, 68, 640*640*2)
    srd(S_W1, 72, 640*1728*2)
    srd(S_W2, 74, 1728*640*2)
    srd(S_OUT, 76, 2048*640*2)
    a(f"""
    s_load_dword s{S_TAG}, s[80:81], {WS_EPOCH}
    s_waitcnt lgkmcnt(0)
    s_mul_i32 s{S_TAG}, s{S_TAG}, 0x9e3779b1
    s_add_u32 s{S_TAG}, s{S_TAG}, 0x7f4a7c15
    """)

def kernel_header(name):
    return f""".globl {name}
.p2align 8
.type {name},@function
{name}:
"""
def kernel_desc(name, vgpr=256, accum=256):
    return f""".amdhsa_kernel {name}
  .amdhsa_next_free_vgpr {vgpr}
  .amdhsa_next_free_sgpr 102
  .amdhsa_accum_offset {accum}
  .amdhsa_group_segment_fixed_size 0
  .amdhsa_kernarg_size 72
  .amdhsa_user_sgpr_count 2
  .amdhsa_user_sgpr_kernarg_segment_ptr 1
  .amdhsa_system_sgpr_workgroup_id_x 1
.end_amdhsa_kernel
"""

WS_PROF = 32 << 20
def stamp_start(a):
    a("""
    s_memtime s[84:85]
    s_memrealtime s[86:87]
    """)
def stamp(a, slot, wave=0):
    a(f"""
    s_memtime s[88:89]
    s_memrealtime s[90:91]
    s_waitcnt lgkmcnt(0)
    s_sub_u32 s88, s88, s84
    s_sub_u32 s90, s90, s86
    v_mov_b32 v250, s88
    v_mov_b32 v251, s90
    s_lshl_b32 s92, s2, 3
    s_add_u32 s92, s92, s{S_W}
    s_lshl_b32 s92, s92, 3
    s_add_u32 s92, s92, {slot*256*64}
    v_mov_b32 v252, s92
    s_add_u32 s94, s80, {WS_PROF}
    s_addc_u32 s95, s81, 0
    s_mov_b64 s[88:89], exec
    s_mov_b64 exec, 1
    global_store_dwordx2 v252, v[250:251], s[94:95]
    s_mov_b64 exec, s[88:89]
    """)

def stamp_dyn(a, slot, sreg):
    a(f"""
    s_memtime s[88:89]
    s_memrealtime s[90:91]
    s_waitcnt lgkmcnt(0)
    s_sub_u32 s88, s88, s84
    s_sub_u32 s90, s90, s86
    v_mov_b32 v250, s88
    v_mov_b32 v251, s90
    s_lshl_b32 s92, s2, 3
    s_add_u32 s92, s92, s{S_W}
    s_lshl_b32 s92, s92, 3
    s_add_u32 s92, s92, {slot*256*64}
    s_lshl_b32 s93, s{sreg}, 13
    s_add_u32 s92, s92, s93
    v_mov_b32 v252, s92
    s_add_u32 s94, s80, {WS_PROF}
    s_addc_u32 s95, s81, 0
    s_mov_b64 s[88:89], exec
    s_mov_b64 exec, 1
    global_store_dwordx2 v252, v[250:251], s[94:95]
    s_mov_b64 exec, s[88:89]
    """)
```

```python
from common import *
import os
PROF = os.environ.get('PROF','0') == '1'
def stp(a, k):
    if PROF: stamp(a, k)
EXP = os.environ.get('EXP1', '')

P1_CSP  = 131072
P1_CSF  = P1_CSP + 2048
P1_LDS  = P1_CSF + 2048

def phase1(a, store_mod="", load_mod=""):
    SM, LM = store_mod, load_mod
    D = f"s[{S_WS}:{S_WS+3}]"
    sCT, sRB, sG, sTT = 36, 37, 38, 39
    sXOFF, sWOFF, sM0, sCH, sT0, sT1, sT2 = 41, 42, 43, 44, 45, 46, 47
    ACC = 16
    XF = 128; WF = 144
    XA = 72; WA = 76
    VX0, VX1, VW0, VW1 = 84, 85, 86, 87
    TMP = 92
    CS = 100; SEL = 108
    T0, T1, T2, T3, T4, T5 = 2, 3, 4, 5, 6, 7
    L = 1
    LIDLE = a.newlabel("P1_idle"); LEND = a.newlabel("P1_end")
    a(f"""
    s_lshr_b32 s{sT0}, s{S_XCD}, 2
    s_lshl_b32 s{sT0}, s{sT0}, 3
    s_lshr_b32 s{sCT}, s{S_IDX}, 2
    s_add_u32 s{sCT}, s{sCT}, s{sT0}          ; ct
    s_and_b32 s{sRB}, s{S_XCD}, 3
    s_lshl_b32 s{sRB}, s{sRB}, 2
    s_and_b32 s{sT0}, s{S_IDX}, 3
    s_add_u32 s{sRB}, s{sRB}, s{sT0}          ; rb16
    s_lshr_b32 s{sG}, s{S_W}, 2
    s_and_b32 s{sTT}, s{S_W}, 3
    """)
    SX = 176
    a(f"""
    s_lshl_b32 s{sT0}, s2, 3
    s_add_u32 s{sT0}, s{sT0}, s{S_W}
    s_mul_i32 s{sT1}, s{sT0}, 1280
    v_lshlrev_b32 v{T0}, 4, v{L}
    v_mov_b32 v{SX+4}, 0
    v_mov_b32 v{SX+5}, 0
    v_mov_b32 v{SX+6}, 0
    v_mov_b32 v{SX+7}, 0
    buffer_load_dwordx4 v[{SX}:{SX+3}], v{T0}, s[{S_X}:{S_X+3}], s{sT1} offen
    s_mov_b64 exec, 0xffff
    buffer_load_dwordx4 v[{SX+4}:{SX+7}], v{T0}, s[{S_X}:{S_X+3}], s{sT1} offen offset:1024
    s_mov_b64 exec, -1
    s_lshl_b32 s48, s{sT0}, 4
    s_add_u32 s48, s48, {WS_LNS}
    """)
    a(f"""
    v_lshrrev_b32 v{T0}, 3, v{L}
    s_lshl_b32 s{sT0}, s{S_W}, 4
    v_add_u32 v{T0}, s{sT0}, v{T0}
    v_mul_u32_u24 v{T0}, 1280, v{T0}
    v_and_b32 v{T1}, 7, v{L}
    v_lshrrev_b32 v{T2}, 4, v{L}
    v_xor_b32 v{T3}, v{T1}, v{T2}
    v_lshl_add_u32 v{VX0}, v{T3}, 4, v{T0}
    v_xor_b32 v{T3}, 4, v{T3}
    v_lshl_add_u32 v{VX1}, v{T3}, 4, v{T0}
    v_add_u32 v{VX1}, {8*1280-1024}, v{VX1}
    v_and_b32 v{T1}, 15, v{L}
    v_lshlrev_b32 v{T3}, 2, v{T2}
    v_xor_b32 v{T1}, v{T1}, v{T3}             ; unit
    v_mul_u32_u24 v{T4}, 3840, v{T2}
    v_lshl_add_u32 v{VW0}, v{T1}, 4, v{T4}
    v_add_u32 v{VW1}, {4*3840-1024}, v{VW0}
    s_mul_i32 s{sXOFF}, s{sRB}, {128*1280}
    s_mul_i32 s{sWOFF}, s{S_W}, {8*3840}
    s_lshl_b32 s{sT0}, s{sCT}, 8
    s_add_u32 s{sWOFF}, s{sWOFF}, s{sT0}
    s_lshl_b32 s{sM0}, s{S_W}, 11
    s_cmp_eq_u32 s{sCT}, 15
    s_cbranch_scc1 {LIDLE}
    """)
    def dma(stage_const=None, stage_sgpr=None):
        if stage_const is not None: a(f"s_add_u32 m0, s{sM0}, {stage_const*32768}")
        else: a(f"s_add_u32 m0, s{sM0}, s{stage_sgpr}")
        a(f"""
        s_nop 0
        buffer_load_dwordx4 v{VX0}, s[{S_X}:{S_X+3}], s{sXOFF} offen lds
        buffer_load_dwordx4 v{VX1}, s[{S_X}:{S_X+3}], s{sXOFF} offen offset:1024 lds
        s_add_u32 m0, m0, 16384
        s_add_u32 s{sXOFF}, s{sXOFF}, 128
        buffer_load_dwordx4 v{VW0}, s[{S_WQKV}:{S_WQKV+3}], s{sWOFF} offen lds
        buffer_load_dwordx4 v{VW1}, s[{S_WQKV}:{S_WQKV+3}], s{sWOFF} offen offset:1024 lds
        s_add_u32 s{sWOFF}, s{sWOFF}, {64*3840}
        """)
    dma(stage_const=0)
    a(f"""
    v_and_b32 v{T0}, 31, v{L}                 ; n
    v_lshrrev_b32 v{T1}, 5, v{L}              ; hh
    s_lshl_b32 s{sT0}, s{sTT}, 5
    v_add_u32 v{T2}, s{sT0}, v{T0}
    v_lshlrev_b32 v{T2}, 7, v{T2}             ; row*128
    v_bfe_u32 v{T3}, v{T0}, 1, 3              ; f
    """)
    for i in range(4):
        a(f"""
        s_xor_b32 s{sT0}, s{sTT}, {i}
        s_lshl_b32 s{sT0}, s{sT0}, 1
        v_add_u32 v{T4}, s{sT0}, v{T1}
        v_xor_b32 v{T4}, v{T4}, v{T3}
        v_lshl_add_u32 v{XA+i}, v{T4}, 4, v{T2}
        """)
    dma(stage_const=1)
    a(f"""
    v_lshrrev_b32 v{T0}, 4, v{L}              ; g'
    v_and_b32 v{T1}, 15, v{L}                 ; i16
    v_lshrrev_b32 v{T2}, 1, v{T0}             ; hh
    v_and_b32 v{T3}, 1, v{T0}                 ; colblk
    v_lshrrev_b32 v{T4}, 2, v{T1}             ; r4
    v_lshl_add_u32 v{T2}, v{T2}, 3, v{T4}
    v_lshlrev_b32 v{T2}, 8, v{T2}
    v_bfe_u32 v{T5}, v{T1}, 1, 1
    v_lshl_add_u32 v{T3}, v{T3}, 1, v{T5}     ; c4
    v_lshl_add_u32 v{T2}, v{T3}, 4, v{T2}
    v_and_b32 v{T5}, 1, v{T1}
    v_lshl_add_u32 v{T2}, v{T5}, 3, v{T2}
    v_add_u32 v{T2}, 16384, v{T2}
    """)
    for t in range(2):
        a(f"""
        s_lshl_b32 s{sT0}, s{sG}, 1
        s_add_u32 s{sT0}, s{sT0}, {t}
        v_xor_b32 v{T3}, s{sT0}, v{T4}
        v_lshl_add_u32 v{T3}, v{T3}, 6, v{T2}
        """)
        for i in range(4):
            a(f"""
            s_xor_b32 s{sT0}, s{sTT}, {i}
            s_lshl_b32 s{sT0}, s{sT0}, 12
            v_add_u32 v{WA+2*i+t}, s{sT0}, v{T3}
            """)
    dma(stage_const=2)
    for r in range(32): a(f"v_mov_b32 v{ACC+r}, 0")
    for r in range(8): a(f"v_mov_b32 v{CS+r}, 0")
    a(f"""
    v_and_b32 v{T0}, 15, v{L}
    v_bfe_u32 v{T1}, v{L}, 4, 1
    v_cmp_eq_u32 vcc, v{T0}, v{T1}
    v_mov_b32 v{T2}, 0x3f803f80
    v_mov_b32 v{T3}, 0
    v_cndmask_b32 v{SEL}, v{T3}, v{T2}, vcc
    v_mov_b32 v{SEL+1}, v{SEL}
    v_mov_b32 v{SEL+2}, v{SEL}
    v_mov_b32 v{SEL+3}, v{SEL}
    """)
    def lnstats(vm):
        a(f"s_waitcnt vmcnt({vm})")
        S1, S2 = TMP, TMP+1
        a(f"v_mov_b32 v{S1}, 0\nv_mov_b32 v{S2}, 0")
        for r in range(8):
            a(f"""
            v_lshlrev_b32 v{TMP+2}, 16, v{SX+r}
            v_and_b32 v{TMP+3}, 0xffff0000, v{SX+r}
            v_add_f32 v{S1}, v{S1}, v{TMP+2}
            v_fmac_f32 v{S2}, v{TMP+2}, v{TMP+2}
            v_add_f32 v{S1}, v{S1}, v{TMP+3}
            v_fmac_f32 v{S2}, v{TMP+3}, v{TMP+3}
            """)
        for reg in (S1, S2):
            for sh in (1, 2, 4, 8):
                a(f"v_add_f32_dpp v{reg}, v{reg}, v{reg} row_shr:{sh} row_mask:0xf bank_mask:0xf bound_ctrl:0")
            a(f"v_add_f32_dpp v{reg}, v{reg}, v{reg} row_bcast:15 row_mask:0xa bank_mask:0xf")
            a(f"v_add_f32_dpp v{reg}, v{reg}, v{reg} row_bcast:31 row_mask:0xc bank_mask:0xf")
        a(f"""
        v_mul_f32 v{S1}, {f32bits(1.0/640):#x}, v{S1}
        v_mul_f32 v{S2}, {f32bits(1.0/640):#x}, v{S2}
        v_fma_f32 v{S2}, -v{S1}, v{S1}, v{S2}
        v_max_f32 v{S2}, 0, v{S2}
        v_add_f32 v{S2}, {f32bits(1e-5):#x}, v{S2}
        v_rsq_f32 v{TMP+1}, v{S2}
        v_mov_b32 v{TMP+2}, s{S_TAG}
        v_mov_b32 v{TMP+3}, s{S_TAG}
        v_mov_b32 v{T0}, 0
        s_mov_b32 exec_lo, 0
        s_mov_b32 exec_hi, 0x80000000
        buffer_store_dwordx4 v[{TMP}:{TMP+3}], v{T0}, {D}, s48 offen sc1
        s_mov_b64 exec, -1
        """)
    lnstats(12)
    def reads(i, cc, s):
        off = cc * 32768
        a(f"ds_read_b128 v[{XF+4*s}:{XF+4*s+3}], v{XA+i} offset:{off}")
        for t in range(2):
            b = WF + 8*s + 4*t
            a(f"ds_read_b64_tr_b16 v[{b}:{b+1}], v{WA+2*i+t} offset:{off}")
            a(f"ds_read_b64_tr_b16 v[{b+2}:{b+3}], v{WA+2*i+t} offset:{off+1024}")
    stp(a, 4)
    a(f"""
    s_waitcnt vmcnt(9)
    s_barrier
    """)
    stp(a, 5)
    reads(0, 0, 0)
    reads(1, 0, 1)
    a(f"s_mov_b32 s{sCH}, 0")
    sDO = 40
    a(f"s_mov_b32 s{sDO}, 0")
    def dma_piece(k):
        Ls = a.newlabel("P1_nd")
        a(f"""
        s_cmp_eq_u32 s{sDO}, 0
        s_cbranch_scc1 {Ls}
        """)
        if k == 0:
            a(f"""
            s_add_u32 m0, s{sM0}, s{sT0}
            s_nop 0
            buffer_load_dwordx4 v{VX0}, s[{S_X}:{S_X+3}], s{sXOFF} offen lds
            """)
        elif k == 1:
            a(f"""
            buffer_load_dwordx4 v{VX1}, s[{S_X}:{S_X+3}], s{sXOFF} offen offset:1024 lds
            s_add_u32 s{sXOFF}, s{sXOFF}, 128
            """)
        elif k == 2:
            a(f"""
            s_add_u32 m0, m0, 16384
            s_nop 0
            buffer_load_dwordx4 v{VW0}, s[{S_WQKV}:{S_WQKV+3}], s{sWOFF} offen lds
            """)
        else:
            a(f"""
            buffer_load_dwordx4 v{VW1}, s[{S_WQKV}:{S_WQKV+3}], s{sWOFF} offen offset:1024 lds
            s_add_u32 s{sWOFF}, s{sWOFF}, {64*3840}
            """)
        a.label(Ls)
    def mainloop(swap):
        LOOP = a.newlabel("P1_loop")
        a.label(LOOP)
        for cc in range(2):
            for i in range(4):
                s = i
                xf = XF + 4*s
                def mf(t):
                    wf = WF + 8*s + 4*t
                    A_, B_ = (xf, wf) if swap else (wf, xf)
                    a(f"v_mfma_f32_32x32x16_bf16 v[{ACC+16*t}:{ACC+16*t+15}], v[{A_}:{A_+3}], v[{B_}:{B_+3}], v[{ACC+16*t}:{ACC+16*t+15}]")
                a("s_waitcnt lgkmcnt(5)")
                mf(0)
                if i == 2:
                    Lz = a.newlabel("P1_z")
                    a(f"""
                    s_waitcnt vmcnt(4)
                    s_cmp_lt_u32 s{sCH}, {8-cc}
                    s_cbranch_scc1 {Lz}
                    s_waitcnt vmcnt(0)
                    """)
                    a.label(Lz)
                    a("s_barrier")
                mf(1)
                if i == 2:
                    a(f"""
                    s_cmp_lt_u32 s{sCH}, {7-cc}
                    s_cselect_b32 s{sDO}, 1, 0
                    s_add_u32 s{sT0}, s{sCH}, {cc+3}
                    s_and_b32 s{sT0}, s{sT0}, 3
                    s_lshl_b32 s{sT0}, s{sT0}, 15
                    """)
                    if cc == 1:
                        for r in (0, 1):
                            a(f"v_xor_b32 v{XA+r}, 0x10000, v{XA+r}")
                            for t in range(2): a(f"v_xor_b32 v{WA+2*r+t}, 0x10000, v{WA+2*r+t}")
                if i < 2: reads(i + 2, cc, (i + 2) & 3)
                else: reads(i - 2, (cc + 1) & 1, (i + 2) & 3)
                if cc == 1 and i == 1:
                    for r in (2, 3):
                        a(f"v_xor_b32 v{XA+r}, 0x10000, v{XA+r}")
                        for t in range(2): a(f"v_xor_b32 v{WA+2*r+t}, 0x10000, v{WA+2*r+t}")
                if i == 0:
                    for t in range(2):
                        wf = WF + 8*s + 4*t
                        a(f"v_mfma_f32_16x16x32_bf16 v[{CS+4*t}:{CS+4*t+3}], v[{SEL}:{SEL+3}], v[{wf}:{wf+3}], v[{CS+4*t}:{CS+4*t+3}]")
                dma_piece((i + 2) & 3)
        a(f"""
        s_add_u32 s{sCH}, s{sCH}, 2
        s_cmp_lt_u32 s{sCH}, 10
        s_cbranch_scc1 {LOOP}
        s_waitcnt lgkmcnt(0)
        """)
    N, HH = 8, 9
    GR = 92
    def common_epi():
        a(f"""
        v_and_b32 v{N}, 31, v{L}
        v_lshrrev_b32 v{HH}, 5, v{L}
        s_lshl_b32 s{sT0}, s{sRB}, 7
        s_lshl_b32 s{sT1}, s{sTT}, 5
        s_add_u32 s{sT0}, s{sT0}, s{sT1}
        s_lshl_b32 s49, s{sT0}, 4
        s_add_u32 s49, s49, {WS_LNS}
        v_lshlrev_b32 v{T5}, 4, v{N}
        buffer_load_dwordx4 v[{GR}:{GR+3}], v{T5}, {D}, s49 offen sc1
        s_lshl_b32 s{sT0}, s{sTT}, 9
        s_lshl_b32 s{sT1}, s{sG}, 8
        s_add_u32 s{sT0}, s{sT0}, s{sT1}
        s_add_u32 s{sT0}, s{sT0}, {P1_CSP}
        v_lshlrev_b32 v{T1}, 2, v{L}
        v_add_u32 v{T1}, s{sT0}, v{T1}
        s_mov_b64 exec, 0xffff
        ds_write_b32 v{T1}, v{CS} offset:0
        ds_write_b32 v{T1}, v{CS+1} offset:64
        ds_write_b32 v{T1}, v{CS+4} offset:128
        ds_write_b32 v{T1}, v{CS+5} offset:192
        s_mov_b64 exec, -1
        s_waitcnt lgkmcnt(0)
        s_barrier
        """)
    def wait_granule():
        Lr = a.newlabel("P1_gr"); Lok = a.newlabel("P1_grok")
        a(f"s_mov_b32 s50, 0")
        a.label(Lr)
        a(f"""
        s_waitcnt vmcnt(0)
        v_cmp_ne_u32 vcc, s{S_TAG}, v{GR+2}
        s_cmp_eq_u64 vcc, 0
        s_cbranch_scc1 {Lok}
        s_add_u32 s50, s50, 1
        s_cmp_lt_u32 s50, {SPIN_MAX}
        s_cbranch_scc0 {Lok}
        buffer_load_dwordx4 v[{GR}:{GR+3}], v{T5}, {D}, s49 offen sc1
        s_branch {Lr}
        """)
        a.label(Lok)
    def wg_stp(k): stp(a, k)
    LV = a.newlabel("P1_vtype")
    a(f"""
    s_cmp_ge_u32 s{sCT}, 10
    s_cbranch_scc1 {LV}
    """)
    mainloop(False)
    stp(a, 6)
    common_epi()
    a(f"""
    s_lshl_b32 s{sT0}, s{sG}, 8
    s_add_u32 s{sT0}, s{sT0}, {P1_CSP}
    v_lshlrev_b32 v{T1}, 2, v{L}
    v_add_u32 v{T1}, s{sT0}, v{T1}
    ds_read_b32 v{XF}, v{T1} offset:0
    ds_read_b32 v{XF+1}, v{T1} offset:512
    ds_read_b32 v{XF+2}, v{T1} offset:1024
    ds_read_b32 v{XF+3}, v{T1} offset:1536
    s_waitcnt lgkmcnt(0)
    v_add_f32 v{XF}, v{XF}, v{XF+1}
    v_add_f32 v{XF+2}, v{XF+2}, v{XF+3}
    v_add_f32 v{XF}, v{XF}, v{XF+2}
    s_lshl_b32 s{sT0}, s{S_W}, 8
    s_add_u32 s{sT0}, s{sT0}, {P1_CSF}
    v_lshlrev_b32 v{T1}, 2, v{L}
    v_add_u32 v{T1}, s{sT0}, v{T1}
    ds_write_b32 v{T1}, v{XF}
    v_lshlrev_b32 v{T1}, 4, v{HH}
    v_add_u32 v{T1}, s{sT0}, v{T1}
    s_waitcnt lgkmcnt(0)
    """)
    CSR = WF
    for t in range(2):
        for j in range(4):
            a(f"ds_read_b128 v[{CSR+16*t+4*j}:{CSR+16*t+4*j+3}], v{T1} offset:{(32*t+8*j)*4}")
    stp(a, 11)
    wait_granule()
    stp(a, 12)
    MEAN, RSTD, RA = GR, GR+1, GR+2
    a(f"""
    s_cmp_lt_u32 s{sCT}, 5
    s_cselect_b32 s{sT1}, {f32bits(QSCALE):#x}, 1.0
    v_mul_f32 v{RA}, s{sT1}, v{RSTD}
    s_waitcnt lgkmcnt(0)
    """)
    for t in range(2):
        for j in range(4):
            for r in range(4):
                acc = ACC + 16*t + 4*j + r
                a(f"v_fma_f32 v{acc}, -v{MEAN}, v{CSR+16*t+4*j+r}, v{acc}")
            for r in range(4):
                acc = ACC + 16*t + 4*j + r
                a(f"v_mul_f32 v{acc}, v{RA}, v{acc}")
    PK = 112
    for t in range(2):
        for j in range(4):
            acc = ACC + 16*t + 4*j
            a(f"v_cvt_pk_bf16_f32 v{PK+8*t+2*j}, v{acc}, v{acc+1}")
            a(f"v_cvt_pk_bf16_f32 v{PK+8*t+2*j+1}, v{acc+2}, v{acc+3}")
    stp(a, 7)
    sBASE, sHS, sQ0, sISK = 50, 51, 52, 53
    a(f"""
    s_cmp_lt_u32 s{sCT}, 5
    s_mov_b32 s{sT0}, {KVREC}
    s_mov_b32 s{sBASE}, {WS_KV}
    s_cselect_b32 s{sT0}, {QREC}, s{sT0}
    s_cselect_b32 s{sBASE}, {WS_QF}, s{sBASE}
    s_cselect_b32 s{sISK}, 0, 1
    s_cselect_b32 s{sT1}, 0, 160
    s_lshl_b32 s{sHS}, s{sT0}, 6
    s_lshl_b32 s{sQ0}, s{sCT}, 5
    s_sub_u32 s{sQ0}, s{sQ0}, s{sT1}
    s_lshl_b32 s{sT1}, s{sG}, 4
    s_add_u32 s{sQ0}, s{sQ0}, s{sT1}               ; qr0
    s_lshl_b32 s{sT2}, s{sRB}, 2
    s_add_u32 s{sT2}, s{sT2}, s{sTT}
    s_mul_i32 s{sT1}, s{sT2}, s{sT0}
    s_add_u32 s{sBASE}, s{sBASE}, s{sT1}
    s_lshl_b32 s54, s{sT2}, 2
    s_add_u32 s54, s54, {WS_KMAX}
    v_lshlrev_b32 v{T0}, 4, v{N}                   ; 16n
    v_lshlrev_b32 v{T1}, 3, v{N}
    v_add_u32 v{T1}, 1024, v{T1}                   ; 1024 + 8n
    """)
    QR, HV, DV, AD = 92, 93, 94, 95
    NRM = 96
    AQ = 160
    for t in range(2):
        for j in range(4):
            idx = 4*t + j
            a(f"""
            s_add_u32 s{sT0}, s{sQ0}, {8*t+2*j}
            v_add_u32 v{QR}, s{sT0}, v{HH}
            v_mul_u32_u24 v{HV}, 205, v{QR}
            v_lshrrev_b32 v{HV}, 10, v{HV}            ; h
            v_mul_u32_u24 v{DV}, 5, v{HV}
            v_sub_u32 v{DV}, v{QR}, v{DV}             ; d
            v_lshrrev_b32 v{AD}, 1, v{DV}
            v_lshl_add_u32 v{AD}, v{AD}, 9, v{T0}     ; (d>>1)*512 + 16n
            v_and_b32 v{T2}, 1, v{DV}
            v_lshl_add_u32 v{AD}, v{T2}, 3, v{AD}
            v_cmp_eq_u32 vcc, 4, v{DV}
            v_mul_lo_u32 v{T3}, v{HV}, s{sHS}
            v_cndmask_b32 v{AD}, v{AD}, v{T1}, vcc
            v_add_u32 v{AD}, v{AD}, v{T3}
            buffer_store_dwordx2 v[{PK+2*idx}:{PK+2*idx+1}], v{AD}, {D}, s{sBASE} offen {SM}
            v_lshlrev_b32 v{AQ+idx}, 8, v{QR}         ; (h*5+d)*64*4 = qr*256
            """)
            a(f"""
            v_mov_b32 v{AQ+8+idx}, v{T3}
            v_mov_b32 v{AQ+16+idx}, v{DV}
            """)
    LNK = a.newlabel("P1_nok")
    a(f"""
    s_cmp_eq_u32 s{sISK}, 0
    s_cbranch_scc1 {LNK}
    """)
    for idx in range(8):
        a(f"v_mov_b32 v{NRM+idx}, 0")
    for idx in range(8):
        a(f"v_dot2c_f32_bf16 v{NRM+idx}, v{PK+2*idx}, v{PK+2*idx}")
    for idx in range(8):
        a(f"v_dot2c_f32_bf16 v{NRM+idx}, v{PK+2*idx+1}, v{PK+2*idx+1}")
    for sh in (1, 2, 4, 8):
        for idx in range(8):
            a(f"v_max_f32_dpp v{NRM+idx}, v{NRM+idx}, v{NRM+idx} row_shr:{sh} row_mask:0xf bank_mask:0xf")
    for idx in range(8):
        a(f"v_max_f32_dpp v{NRM+idx}, v{NRM+idx}, v{NRM+idx} row_bcast:15 row_mask:0xa bank_mask:0xf")
    a(f"""
    s_mov_b32 exec_lo, 0x80000000
    s_mov_b32 exec_hi, 0x80000000
    """)
    for idx in range(8):
        a(f"buffer_store_dword v{NRM+idx}, v{AQ+idx}, {D}, s54 offen {SM}")
    a(f"""
    s_mov_b64 exec, -1
    v_mov_b32 v{T2}, 0x3f803f80
    v_mov_b32 v{T3}, 0x00003f80
    """)
    for idx in range(8):
        Ls = a.newlabel("P1_kc")
        a(f"""
        v_cmp_eq_u32 vcc, 4, v{AQ+16+idx}
        v_cmp_eq_u32 s[56:57], 0, v{N}
        s_and_b64 vcc, vcc, s[56:57]
        s_and_saveexec_b64 s[58:59], vcc
        s_cbranch_execz {Ls}
        buffer_store_dwordx2 v[{T2}:{T2+1}], v{AQ+8+idx}, {D}, s{sBASE} offen offset:{KV_KC} {SM}
        """)
        a.label(Ls)
        a("s_mov_b64 exec, s[58:59]")
    a.label(LNK)
    a(f"s_branch {LEND}")
    a.label(LV)
    mainloop(True)
    stp(a, 6)
    common_epi()
    a(f"""
    s_lshl_b32 s{sT0}, s{sG}, 8
    s_add_u32 s{sT0}, s{sT0}, {P1_CSP}
    v_lshlrev_b32 v{T1}, 2, v{N}
    v_add_u32 v{T1}, s{sT0}, v{T1}
    """)
    for t in range(2):
        for q in range(4):
            a(f"ds_read_b32 v{XF+4*t+q}, v{T1} offset:{128*t + 512*q}")
    wait_granule()
    a(f"""
    s_lshl_b32 s{sT0}, s{S_W}, 8
    s_add_u32 s{sT0}, s{sT0}, {P1_CSF}
    v_lshlrev_b32 v{T1}, 2, v{N}
    v_add_u32 v{T1}, s{sT0}, v{T1}
    s_mov_b64 exec, 0xffffffff
    ds_write_b32 v{T1}, v{GR}
    ds_write_b32 v{T1}, v{GR+1} offset:128
    s_mov_b64 exec, -1
    v_lshlrev_b32 v{T1}, 4, v{HH}
    v_add_u32 v{T1}, s{sT0}, v{T1}
    s_waitcnt lgkmcnt(0)
    """)
    MR = WF
    for j in range(4):
        a(f"ds_read_b128 v[{MR+4*j}:{MR+4*j+3}], v{T1} offset:{32*j}")
        a(f"ds_read_b128 v[{MR+16+4*j}:{MR+16+4*j+3}], v{T1} offset:{128+32*j}")
    for t in range(2):
        a(f"""
        v_add_f32 v{XF+4*t}, v{XF+4*t}, v{XF+4*t+1}
        v_add_f32 v{XF+4*t+2}, v{XF+4*t+2}, v{XF+4*t+3}
        v_add_f32 v{XF+4*t}, v{XF+4*t}, v{XF+4*t+2}
        """)
    a("s_waitcnt lgkmcnt(0)")
    PK = 112
    for t in range(2):
        for r in range(16):
            acc = ACC + 16*t + r
            a(f"v_fma_f32 v{acc}, -v{MR+r}, v{XF+4*t}, v{acc}")
        for r in range(16):
            acc = ACC + 16*t + r
            a(f"v_mul_f32 v{acc}, v{MR+16+r}, v{acc}")
        for r in range(8):
            a(f"v_cvt_pk_bf16_f32 v{PK+8*t+r}, v{ACC+16*t+2*r}, v{ACC+16*t+2*r+1}")
    a(f"""
    s_sub_u32 s{sT0}, s{sCT}, 10
    s_lshl_b32 s{sT0}, s{sT0}, 7
    s_lshl_b32 s{sT1}, s{sG}, 6
    s_add_u32 s{sT0}, s{sT0}, s{sT1}
    s_lshl_b32 s{sT2}, s{sRB}, 2
    s_add_u32 s{sT2}, s{sT2}, s{sTT}
    s_mul_i32 s50, s{sT2}, {KVREC}
    s_add_u32 s50, s50, {WS_KV}
    s_mov_b32 s51, {64*KVREC}
    v_mul_u32_u24 v{T4}, 320, v{HH}
    v_mov_b32 v{TMP}, 0x3f803f80
    v_mov_b32 v{TMP+1}, 0x3f803f80
    v_mov_b32 v{TMP+2}, 0x3f803f80
    v_mov_b32 v{TMP+3}, 0x3f803f80
    v_mov_b32 v{TMP+4}, 0
    v_mov_b32 v{TMP+5}, 0
    v_mov_b32 v{TMP+6}, 0
    v_mov_b32 v{TMP+7}, 0
    """)
    for t in range(2):
        Ls = a.newlabel("P1_vc")
        a(f"""
        v_add_u32 v{T0}, s{sT0}, v{N}
        v_add_u32 v{T0}, {32*t}, v{T0}
        v_mul_u32_u24 v{T1}, 3277, v{T0}
        v_lshrrev_b32 v{T1}, 16, v{T1}             ; h
        v_mul_u32_u24 v{T2}, 20, v{T1}
        v_sub_u32 v{T2}, v{T0}, v{T2}              ; dh
        v_mul_lo_u32 v{T1}, v{T1}, s51
        v_lshl_add_u32 v{T3}, v{T2}, 4, v{T1}
        v_add_u32 v{T3}, v{T3}, v{T4}
        buffer_store_dwordx4 v[{PK+8*t}:{PK+8*t+3}], v{T3}, {D}, s50 offen offset:{KV_V} {SM}
        buffer_store_dwordx4 v[{PK+8*t+4}:{PK+8*t+7}], v{T3}, {D}, s50 offen offset:{KV_V+640} {SM}
        v_cmp_eq_u32 vcc, 0, v{T2}
        v_cmp_eq_u32 s[56:57], 0, v{HH}
        s_and_b64 vcc, vcc, s[56:57]
        s_and_saveexec_b64 s[58:59], vcc
        s_cbranch_execz {Ls}
        buffer_store_dwordx4 v[{TMP}:{TMP+3}], v{T1}, {D}, s50 offen offset:{KV_ONES} {SM}
        buffer_store_dwordx4 v[{TMP+4}:{TMP+7}], v{T1}, {D}, s50 offen offset:{KV_ZERO} {SM}
        """)
        a.label(Ls)
        a("s_mov_b64 exec, s[58:59]")
    a(f"s_branch {LEND}")
    a.label(LIDLE)
    lnstats(0)
    a.label(LEND)
```

```python
from common import *
import os
PROF = os.environ.get('PROF','0') == '1'
def stp(a, k):
    if PROF: stamp(a, k)

P2_STAGE = 24576
P2_XCH = 3 * P2_STAGE
P2_LDS = P2_XCH + 8 * 3072

EXP = os.environ.get('EXP2', '')
def phase2(a, load_mod="", store_mod="", hooks=None):
    LM, SM = load_mod, store_mod
    hooks = hooks or {}
    sH, sQB, sKV, sM0, sST, sDK, sKH, sT0, sT1, sT2 = 36, 37, 38, 39, 40, 41, 42, 43, 44, 45
    sSLOT, sQT, sQP, sNX, sDM = 46, 47, 51, 52, 53
    D = f"s[{S_WS}:{S_WS+3}]"
    L = 1
    T0, T1, T2, T3, T4, T5 = 2, 3, 4, 5, 6, 7
    N, HH = 8, 9
    NQ, MX = 10, 11
    QA = [12, 60]; QB = [16, 22]
    AKA, AKB, AV0, AV1 = 18, 19, 20, 21
    VL16 = 112
    KA = [24, 28]; KB = [32, 34]; V0 = [36, 40]; V1 = [44, 48]
    P0, P1 = 52, 56
    S = [64, 80]; O = [96, 114]
    KM = 113
    a(f"""
    s_lshr_b32 s{sT0}, s{S_IDX}, 3
    s_lshl_b32 s{sH}, s{S_XCD}, 2
    s_add_u32 s{sH}, s{sH}, s{sT0}            ; h
    s_and_b32 s{sQB}, s{S_IDX}, 7             ; qb
    s_and_b32 s{sQP}, s{S_W}, 3               ; qp
    s_lshr_b32 s{sKH}, s{S_W}, 2              ; kh
    v_lshlrev_b32 v{VL16}, 4, v{L}
    s_lshl_b32 s{sT0}, s{sH}, 6               ; h*64
    s_lshl_b32 s{sT1}, s{sKH}, 5
    s_add_u32 s{sT1}, s{sT1}, s{sQP}
    s_add_u32 s{sT1}, s{sT1}, s{sT0}
    s_mul_i32 s{sKV}, s{sT1}, {KVREC}
    s_add_u32 s{sKV}, s{sKV}, {WS_KV}
    s_mul_i32 s{sM0}, s{S_W}, 3072
    """)
    if "pre_load" in hooks: hooks["pre_load"](a)
    def dma(slot_sgpr=None, slot_const=None):
        if slot_const is not None:
            a(f"s_add_u32 m0, s{sM0}, {slot_const*P2_STAGE}")
        else:
            a(f"s_add_u32 m0, s{sM0}, s{slot_sgpr}")
        a(f"""
        s_nop 0
        buffer_load_dwordx4 v{VL16}, {D}, s{sKV} offen {LM} lds
        buffer_load_dwordx4 v{VL16}, {D}, s{sKV} offen offset:1024 {LM} lds
        buffer_load_dwordx4 v{VL16}, {D}, s{sKV} offen offset:2048 {LM} lds
        s_add_u32 s{sKV}, s{sKV}, {4*KVREC}
        """)
    a(f"""
    s_lshl_b32 s{sQT}, s{sQB}, 3
    s_lshl_b32 s{sT1}, s{sQP}, 1
    s_add_u32 s{sQT}, s{sQT}, s{sT1}
    s_add_u32 s{sT1}, s{sQT}, s{sT0}
    s_add_u32 s{sQT}, s{sQT}, s{sKH}
    s_add_u32 s{sT2}, s{sT1}, s{sKH}
    s_mul_i32 s{sT2}, s{sT2}, {QREC}
    s_add_u32 s{sT2}, s{sT2}, {WS_QF}
    s_xor_b32 s48, s{sKH}, 1
    s_add_u32 s{sT1}, s{sT1}, s48
    s_mul_i32 s{sT1}, s{sT1}, {QREC}
    s_add_u32 s{sT1}, s{sT1}, {WS_QF}
    v_mov_b32 v{QB[0]}, 0
    v_mov_b32 v{QB[0]+1}, 0
    v_mov_b32 v{QB[1]}, 0
    v_mov_b32 v{QB[1]+1}, 0
    v_lshlrev_b32 v{T0}, 3, v{L}
    v_lshlrev_b32 v{T1}, 2, v{L}
    s_mul_i32 s48, s{sH}, 1280
    s_add_u32 s48, s48, {WS_KMAX}
    buffer_load_dwordx4 v[{QA[0]}:{QA[0]+3}], v{VL16}, {D}, s{sT2} offen {LM}
    buffer_load_dwordx4 v[{QA[1]}:{QA[1]+3}], v{VL16}, {D}, s{sT1} offen {LM}
    buffer_load_dword v{KM}, v{T1}, {D}, s48 offen {LM}
    buffer_load_dword v{T2}, v{T1}, {D}, s48 offen offset:256 {LM}
    buffer_load_dword v{T3}, v{T1}, {D}, s48 offen offset:512 {LM}
    buffer_load_dword v{T4}, v{T1}, {D}, s48 offen offset:768 {LM}
    buffer_load_dword v{T5}, v{T1}, {D}, s48 offen offset:1024 {LM}
    s_mov_b64 exec, 0xffffffff
    buffer_load_dwordx2 v[{QB[0]}:{QB[0]+1}], v{T0}, {D}, s{sT2} offen offset:1024 {LM}
    buffer_load_dwordx2 v[{QB[1]}:{QB[1]+1}], v{T0}, {D}, s{sT1} offen offset:1024 {LM}
    s_mov_b64 exec, -1
    """)
    dma(slot_const=0); dma(slot_const=1)
    a(f"""
    s_waitcnt vmcnt(8)
    v_add_f32 v{KM}, v{KM}, v{T2}
    v_add_f32 v{T3}, v{T3}, v{T4}
    v_add_f32 v{KM}, v{KM}, v{T5}
    v_add_f32 v{KM}, v{KM}, v{T3}
    """)
    a(f"""
    v_and_b32 v{N}, 31, v{L}
    v_lshrrev_b32 v{HH}, 5, v{L}
    v_cmp_eq_u32 vcc, 1, v{HH}
    v_lshlrev_b32 v{T0}, 3, v{N}
    v_add_u32 v{T0}, {KV_KB}, v{T0}
    v_mov_b32 v{T1}, {KV_KC}
    v_cndmask_b32 v{AKB}, v{T0}, v{T1}, vcc
    v_mul_u32_u24 v{T0}, 320, v{HH}
    v_lshl_add_u32 v{T0}, v{N}, 4, v{T0}
    v_add_u32 v{T0}, {KV_V}, v{T0}
    v_add_u32 v{T1}, 640, v{T0}
    v_mov_b32 v{T2}, {KV_ZERO}
    v_mov_b32 v{T3}, {KV_ONES}
    v_cmp_eq_u32 vcc, 20, v{N}
    s_mul_i32 s{sSLOT}, s{sKH}, {4*3072}
    v_cndmask_b32 v{T2}, v{T2}, v{T3}, vcc
    v_cmp_gt_u32 vcc, 20, v{N}
    v_add_u32 v{AKA}, s{sSLOT}, v{VL16}
    v_add_u32 v{AKB}, s{sSLOT}, v{AKB}
    v_cndmask_b32 v{AV0}, v{T2}, v{T0}, vcc
    v_cndmask_b32 v{AV1}, v{T2}, v{T1}, vcc
    v_add_u32 v{AV0}, s{sSLOT}, v{AV0}
    v_add_u32 v{AV1}, s{sSLOT}, v{AV1}
    """)
    for u in range(2):
        for r in range(16): a(f"v_mov_b32 v{O[u]+r}, 0")
    for r in range(4): a(f"v_mov_b32 v{P1+r}, 0")
    for r in range(4): a(f"v_mov_b32 v{V1[1]+r}, 0")
    def split_into_QB(src, qb):
        a(f"""
        v_and_b32 v{T0}, 0xffff0000, v{src}
        v_sub_f32 v{T1}, v{src}, v{T0}
        v_and_b32 v{T2}, 0xffff0000, v{T1}
        v_sub_f32 v{T1}, v{T1}, v{T2}
        v_lshrrev_b32 v{T0}, 16, v{T0}
        v_or_b32 v{T0}, v{T0}, v{T2}
        v_lshrrev_b32 v{T1}, 16, v{T1}
        v_cmp_eq_u32 vcc, 1, v{HH}
        s_nop 1
        v_cndmask_b32 v{qb}, v{qb}, v{T0}, vcc
        v_cndmask_b32 v{qb+1}, v{qb+1}, v{T1}, vcc
        """)
    a("s_waitcnt vmcnt(6)")
    for sh in (1, 2, 4, 8):
        a(f"v_max_f32_dpp v{KM}, v{KM}, v{KM} row_shr:{sh} row_mask:0xf bank_mask:0xf")
    a(f"v_max_f32_dpp v{KM}, v{KM}, v{KM} row_bcast:15 row_mask:0xa bank_mask:0xf")
    a(f"v_max_f32_dpp v{KM}, v{KM}, v{KM} row_bcast:31 row_mask:0xc bank_mask:0xf")
    a(f"v_readlane_b32 s{sT0}, v{KM}, 63")
    for u in range(2):
        a(f"v_mov_b32 v{NQ}, 0")
        for r in range(4): a(f"v_dot2c_f32_bf16 v{NQ}, v{QA[u]+r}, v{QA[u]+r}")
        for r in range(2): a(f"v_dot2c_f32_bf16 v{NQ}, v{QB[u]+r}, v{QB[u]+r}")
        a(f"""
        s_nop 2
        v_mov_b32 v{T0}, v{NQ}
        s_nop 1
        v_permlane32_swap_b32 v{NQ}, v{T0}
        v_add_f32 v{NQ}, v{NQ}, v{T0}
        v_mul_f32 v{NQ}, s{sT0}, v{NQ}
        v_sqrt_f32 v{NQ}, v{NQ}
        s_nop 0
        v_mul_f32 v{NQ}, {f32bits(-(1.0+2.0**-10)):#x}, v{NQ}      ; -m
        """)
        split_into_QB(NQ, QB[u])
    def rd_K(s, off):
        a(f"ds_read_b128 v[{KA[s]}:{KA[s]+3}], v{AKA} offset:{off}")
        a(f"ds_read_b64 v[{KB[s]}:{KB[s]+1}], v{AKB} offset:{off}")
    def rd_V(s, off):
        a(f"ds_read_b128 v[{V0[s]}:{V0[s]+3}], v{AV0} offset:{off}")
        a(f"ds_read_b128 v[{V1[s]}:{V1[s]+3}], v{AV1} offset:{off}")
    def qk1(sb, ks, u): a(f"v_mfma_f32_32x32x16_bf16 v[{S[sb]}:{S[sb]+15}], v[{KA[ks]}:{KA[ks]+3}], v[{QA[u]}:{QA[u]+3}], 0")
    def qk2(sb, ks, u): a(f"v_mfma_f32_32x32x8_bf16 v[{S[sb]}:{S[sb]+15}], v[{KB[ks]}:{KB[ks]+1}], v[{QB[u]}:{QB[u]+1}], v[{S[sb]}:{S[sb]+15}]")
    def pv(u, V, P): a(f"v_mfma_f32_32x32x16_bf16 v[{O[u]}:{O[u]+15}], v[{V}:{V+3}], v[{P}:{P+3}], v[{O[u]}:{O[u]+15}]")
    def ex(s, r0, n):
        for r in range(r0, r0+n): a(f"v_exp_f32 v{S[s]+r}, v{S[s]+r}")
    def cv(dst, s, r): a(f"v_cvt_pk_bf16_f32 v{dst}, v{S[s]+r}, v{S[s]+r+1}")
    stp(a, 8)
    a(f"""
    s_waitcnt vmcnt(3)
    s_barrier
    """)
    stp(a, 9)
    if 'noread' in EXP:
        rd_K(1, 3072); rd_V(1, 3072)
    rd_K(0, 0)
    rd_V(0, 0)
    a("s_waitcnt lgkmcnt(2)")
    qk1(0, 0, 0); qk2(0, 0, 0)
    a(f"""
    s_mov_b32 s{sST}, 0
    s_mov_b32 s{sSLOT}, 0
    """)
    LOOP = a.newlabel("P2_loop")
    a.label(LOOP)
    for t in range(8):
        i, u = t >> 1, t & 1
        if t == 6:
            a(f"""
            s_waitcnt vmcnt(0)
            s_barrier
            v_add_u32 v{AKA}, s{sDK}, v{AKA}
            v_add_u32 v{AKB}, s{sDK}, v{AKB}
            """)
        if t == 7:
            a(f"""
            v_add_u32 v{AV0}, s{sDK}, v{AV0}
            v_add_u32 v{AV1}, s{sDK}, v{AV1}
            """)
        nks = (i & 1) if u == 0 else ((i + 1) & 1)
        nu = u ^ 1
        pu = u ^ 1
        pvs = ((i - 1) & 1) if u == 0 else (i & 1)
        if 'prio1' in EXP: a(f"s_setprio {1 - u}")
        if 'prio2' in EXP and t % 2 == 0: a(f"s_setprio {1 - ((t >> 1) & 1)}")
        if 'prio4' in EXP and t % 4 == 0: a(f"s_setprio {1 - ((t >> 2) & 1)}")
        if u == 1 and 'noread' not in EXP: a("s_waitcnt lgkmcnt(0)")
        qk1(nu, nks, nu)
        ex(u, 0, 4)
        pv(pu, V1[pvs], P1)
        if 'noread' in EXP: pass
        elif u == 0: rd_K((i + 1) & 1, ((i + 1) % 4) * 3072)
        else: rd_V((i + 1) & 1, ((i + 1) % 4) * 3072)
        if t == 2:
            a(f"""
            s_add_u32 s{sT0}, s{sSLOT}, {P2_STAGE}
            s_cmp_eq_u32 s{sT0}, {3*P2_STAGE}
            s_cselect_b32 s{sT0}, 0, s{sT0}
            s_sub_u32 s{sDK}, s{sT0}, s{sSLOT}         ; delta
            """)
        if t == 3:
            a(f"""
            s_add_u32 s{sNX}, s{sT0}, {P2_STAGE}
            s_cmp_eq_u32 s{sNX}, {3*P2_STAGE}
            s_cselect_b32 s{sNX}, 0, s{sNX}
            s_mov_b32 s{sSLOT}, s{sT0}
            """)
        if t == 4:
            a(f"""
            s_cmp_lt_u32 s{sST}, 6
            s_cselect_b32 s{sDM}, s{sKH}, 2
            """)
        if t in (6, 7):
            Ln = a.newlabel("P2_nodma")
            a(f"""
            s_cmp_eq_u32 s{sDM}, {t-6}
            s_cbranch_scc0 {Ln}
            """)
            dma(slot_sgpr=sNX)
            a.label(Ln)
            if t == 7 and "stage_hook" in hooks: hooks["stage_hook"](a)
        ex(u, 4, 4)
        cv(P0, u, 0); cv(P0+1, u, 2)
        qk2(nu, nks, nu)
        cv(P0+2, u, 4); cv(P0+3, u, 6)
        ex(u, 8, 4)
        if u == 0 and 'noread' not in EXP: a("s_waitcnt lgkmcnt(2)")
        pv(u, V0[i & 1], P0)
        ex(u, 12, 4)
        cv(P1, u, 8); cv(P1+1, u, 10); cv(P1+2, u, 12); cv(P1+3, u, 14)
    a(f"""
    s_add_u32 s{sST}, s{sST}, 1
    s_cmp_lt_u32 s{sST}, 8
    s_cbranch_scc1 {LOOP}
    s_waitcnt lgkmcnt(0)
    """)
    pv(1, V1[1], P1)
    a("s_setprio 0")
    stp(a, 10)
    a(f"""
    s_mul_i32 s{sT0}, s{S_W}, 3072
    s_add_u32 s{sT0}, s{sT0}, {P2_XCH}
    v_add_u32 v{T0}, s{sT0}, v{VL16}
    s_xor_b32 s{sT1}, s{S_W}, 4
    s_mul_i32 s{sT1}, s{sT1}, 3072
    s_add_u32 s{sT1}, s{sT1}, {P2_XCH}
    v_add_u32 v{T1}, s{sT1}, v{VL16}
    """)
    for k in range(3):
        a(f"ds_write_b128 v{T0}, v[{O[1]+4*k}:{O[1]+4*k+3}] offset:{1024*k}")
    a(f"""
    s_waitcnt lgkmcnt(0)
    s_barrier
    """)
    for k in range(3):
        a(f"ds_read_b128 v[{S[0]+4*k}:{S[0]+4*k+3}], v{T1} offset:{1024*k}")
    a("s_waitcnt lgkmcnt(0)")
    OO = O[0]
    for r in range(12): a(f"v_add_f32 v{OO+r}, v{OO+r}, v{S[0]+r}")
    LFIN = a.newlabel("P2_fin")
    LV = 10
    def get_l():
        a(f"""
        v_mov_b32 v{LV}, v{OO+8}
        v_mov_b32 v{T0}, v{OO+8}
        s_nop 1
        v_permlane32_swap_b32 v{LV}, v{T0}
        """)
    get_l()
    a(f"""
    v_cmp_nle_f32 vcc, {f32bits(2.0**-64):#x}, v{T0}
    s_cmp_eq_u64 vcc, 0
    s_cbranch_scc1 {LFIN}
    """)
    a.c("fallback: exact row max, recompute this wave's tile over all keys (direct global loads)")
    sR, sCnt = 48, 49
    a(f"""
    s_lshl_b32 s{sT0}, s{sH}, 6
    s_mul_i32 s{sR}, s{sT0}, {KVREC}
    s_add_u32 s{sR}, s{sR}, {WS_KV}
    s_mov_b32 s50, s{sR}
    s_mul_i32 s{sT1}, s{sKH}, {4*3072}
    s_add_u32 s{sT1}, s{sT1}, s{sSLOT}
    v_subrev_u32 v{AKB}, s{sT1}, v{AKB}
    v_subrev_u32 v{AV0}, s{sT1}, v{AV0}
    v_subrev_u32 v{AV1}, s{sT1}, v{AV1}
    v_mov_b32 v{MX}, 0xff800000
    s_mov_b32 s{sCnt}, 0
    """)
    L1 = a.newlabel("P2_fb1")
    a.label(L1)
    a(f"""
    v_mov_b32 v{KB[0]}, 0
    v_mov_b32 v{KB[0]+1}, 0
    buffer_load_dwordx4 v[{KA[0]}:{KA[0]+3}], v{VL16}, {D}, s{sR} offen {LM}
    s_mov_b64 exec, 0xffffffff
    buffer_load_dwordx2 v[{KB[0]}:{KB[0]+1}], v{AKB}, {D}, s{sR} offen {LM}
    s_mov_b64 exec, -1
    s_waitcnt vmcnt(0)
    """)
    qk1(0, 0, 0); qk2(0, 0, 0)
    for r in range(16): a(f"v_max_f32 v{MX}, v{MX}, v{S[0]+r}")
    a(f"""
    s_add_u32 s{sR}, s{sR}, {KVREC}
    s_add_u32 s{sCnt}, s{sCnt}, 1
    s_cmp_lt_u32 s{sCnt}, 64
    s_cbranch_scc1 {L1}
    v_mov_b32 v{T0}, v{MX}
    s_nop 1
    v_permlane32_swap_b32 v{MX}, v{T0}
    v_max_f32 v{MX}, v{MX}, v{T0}
    v_sub_f32 v{MX}, 0, v{MX}
    """)
    split_into_QB(MX, QB[0])
    for r in range(16): a(f"v_mov_b32 v{OO+r}, 0")
    a(f"""
    s_mov_b32 s{sR}, s50
    s_mov_b32 s{sCnt}, 0
    """)
    L2 = a.newlabel("P2_fb2")
    a.label(L2)
    a(f"""
    buffer_load_dwordx4 v[{KA[0]}:{KA[0]+3}], v{VL16}, {D}, s{sR} offen {LM}
    buffer_load_dwordx2 v[{KB[0]}:{KB[0]+1}], v{AKB}, {D}, s{sR} offen {LM}
    buffer_load_dwordx4 v[{V0[0]}:{V0[0]+3}], v{AV0}, {D}, s{sR} offen {LM}
    buffer_load_dwordx4 v[{V1[0]}:{V1[0]+3}], v{AV1}, {D}, s{sR} offen {LM}
    s_waitcnt vmcnt(0)
    """)
    qk1(0, 0, 0); qk2(0, 0, 0)
    ex(0, 0, 16)
    for i in range(4): cv(P0+i, 0, 2*i)
    for i in range(4): cv(P1+i, 0, 8+2*i)
    pv(0, V0[0], P0); pv(0, V1[0], P1)
    a(f"""
    s_add_u32 s{sR}, s{sR}, {KVREC}
    s_add_u32 s{sCnt}, s{sCnt}, 1
    s_cmp_lt_u32 s{sCnt}, 64
    s_cbranch_scc1 {L2}
    """)
    get_l()
    a.label(LFIN)
    a(f"v_rcp_f32 v{T0}, v{T0}")
    a("s_nop 0")
    for r in range(12): a(f"v_mul_f32 v{OO+r}, v{OO+r}, v{T0}")
    PK = 52
    for i in range(6): a(f"v_cvt_pk_bf16_f32 v{PK+i}, v{OO+2*i}, v{OO+2*i+1}")
    a(f"""
    s_lshl_b32 s{sT0}, s{sQT}, 5
    s_lshr_b32 s{sT1}, s{sT0}, 6                 ; rb
    s_mul_i32 s{sT1}, s{sT1}, {80*1024}
    s_lshr_b32 s{sT2}, s{sT0}, 4
    s_and_b32 s{sT2}, s{sT2}, 3
    s_lshl_b32 s{sT2}, s{sT2}, 10
    s_add_u32 s{sT1}, s{sT1}, s{sT2}
    s_add_u32 s{sT1}, s{sT1}, {WS_OF}            ; soffset
    v_lshrrev_b32 v{T1}, 4, v{N}                 ; n>>4
    v_lshlrev_b32 v{T1}, 10, v{T1}
    v_and_b32 v{T2}, 15, v{N}
    v_lshl_add_u32 v{T1}, v{T2}, 4, v{T1}
    s_mul_i32 s{sT0}, s{sH}, 20
    """)
    def gaddr(dst, kreg):
        a(f"""
        v_lshrrev_b32 v{T3}, 5, v{kreg}
        v_lshl_add_u32 v{dst}, v{T3}, 12, v{T1}
        v_bfe_u32 v{T3}, v{kreg}, 3, 2
        v_lshl_add_u32 v{dst}, v{T3}, 8, v{dst}
        v_bfe_u32 v{T3}, v{kreg}, 2, 1
        v_lshl_add_u32 v{dst}, v{T3}, 3, v{dst}
        """)
    a(f"""
    v_lshlrev_b32 v{T2}, 2, v{HH}
    v_add_u32 v{T2}, s{sT0}, v{T2}               ; k0 = 20h + 4hh
    """)
    gaddr(T4, T2)
    a(f"buffer_store_dwordx2 v[{PK}:{PK+1}], v{T4}, {D}, s{sT1} offen {SM}")
    a(f"v_add_u32 v{T2}, 8, v{T2}")
    gaddr(T5, T2)
    a(f"buffer_store_dwordx2 v[{PK+2}:{PK+3}], v{T5}, {D}, s{sT1} offen {SM}")
    a(f"v_add_u32 v{T2}, 8, v{T2}")
    gaddr(T4, T2)
    a(f"""
    s_mov_b64 exec, 0xffffffff
    buffer_store_dwordx2 v[{PK+4}:{PK+5}], v{T4}, {D}, s{sT1} offen {SM}
    s_mov_b64 exec, -1
    """)
```

```python
from common import *
import os
PROF = os.environ.get('PROF','0') == '1'
def stp(a, k):
    if PROF: stamp(a, k)

D = f"s[{S_WS}:{S_WS+3}]"
L = 1
T0, T1, T2, T3, T4, T5 = 2, 3, 4, 5, 6, 7
sRB, sJ = 36, 37

def roles(a):
    a(f"""
    s_lshr_b32 s38, s{S_IDX}, 3
    s_lshl_b32 s{sRB}, s{S_XCD}, 2
    s_add_u32 s{sRB}, s{sRB}, s38           ; rb
    s_and_b32 s{sJ}, s{S_IDX}, 7            ; j
    """)

def voff160(a, base, rowstride):
    for p in range(5):
        a(f"""
        v_add_u32 v{T0}, {64*p}, v{L}
        v_mul_u32_u24 v{T1}, 6554, v{T0}
        v_lshrrev_b32 v{T1}, 16, v{T1}          ; row = u/10
        v_mul_u32_u24 v{T2}, 10, v{T1}
        v_sub_u32 v{T2}, v{T0}, v{T2}           ; unit
        v_mul_u32_u24 v{T1}, {rowstride}, v{T1}
        v_lshl_add_u32 v{base+p}, v{T2}, 4, v{T1}
        """)

def tr160_addr(a, dst):
    a(f"""
    v_lshrrev_b32 v{T0}, 4, v{L}               ; q
    v_and_b32 v{T1}, 15, v{L}
    v_lshrrev_b32 v{T2}, 2, v{T1}              ; r4
    v_lshl_add_u32 v{T0}, v{T0}, 3, v{T2}
    v_mul_u32_u24 v{T0}, 160, v{T0}
    v_and_b32 v{T1}, 3, v{T1}
    v_lshl_add_u32 v{dst}, v{T1}, 3, v{T0}
    """)

def bf16_round_pair(a, dst, x0, x1):
    a(f"v_cvt_pk_bf16_f32 v{dst}, v{x0}, v{x1}")

P3_W = 0
P3_RED = 102400
P3_LDS = P3_RED + 8*5*1024

def phase3(a, load_mod="", store_mod="", prefetched=False):
    LM, SM = load_mod, store_mod
    roles(a)
    sNT, sKH, sT0, sT1, sT2, sOF = 38, 39, 40, 41, 42, 43
    VO = 16
    TRA = 21
    BF = 24
    AF = 64
    ACC = 104
    XR = 124
    VL16 = 22
    a(f"""
    s_and_b32 s{sNT}, s{S_W}, 3
    s_lshr_b32 s{sKH}, s{S_W}, 2
    v_lshlrev_b32 v{VL16}, 4, v{L}
    """)
    if not prefetched:
        p3_wo_dma(a)
    a(f"""
    s_mul_i32 s{sOF}, s{sRB}, {80*1024}
    s_mul_i32 s{sT0}, s{sKH}, {40*1024}
    s_add_u32 s{sOF}, s{sOF}, s{sT0}
    s_lshl_b32 s{sT0}, s{sNT}, 10
    s_add_u32 s{sOF}, s{sOF}, s{sT0}
    s_add_u32 s{sOF}, s{sOF}, {WS_OF}
    """)
    for i in range(10):
        a(f"buffer_load_dwordx4 v[{BF+4*i}:{BF+4*i+3}], v{VL16}, {D}, s{sOF} offen {LM}")
        a(f"s_add_u32 s{sOF}, s{sOF}, 4096")
    N16, Q = 8, 9
    a(f"""
    v_and_b32 v{N16}, 15, v{L}
    v_lshrrev_b32 v{Q}, 4, v{L}
    s_lshl_b32 s{sT0}, s{sRB}, 6
    s_lshl_b32 s{sT1}, s{sNT}, 4
    s_add_u32 s{sT0}, s{sT0}, s{sT1}
    s_mul_i32 s{sT0}, s{sT0}, 1280
    s_mul_i32 s{sT1}, s{sJ}, 160
    s_add_u32 s{sT0}, s{sT0}, s{sT1}
    s_mul_i32 s{sT1}, s{sKH}, 96
    s_add_u32 s44, s{sT0}, s{sT1}
    v_mul_u32_u24 v{T0}, 1280, v{N16}
    v_lshl_add_u32 v23, v{Q}, 3, v{T0}           ; n'*1280 + q*8
    """)
    for k in range(3):
        a(f"buffer_load_dwordx2 v[{XR+2*k}:{XR+2*k+1}], v23, s[{S_X}:{S_X+3}], s44 offen offset:{32*k}")
    tr160_addr(a, TRA)
    a(f"""
    s_mul_i32 s{sT0}, s{sKH}, 51200
    v_add_u32 v{TRA}, s{sT0}, v{TRA}
    """)
    for r in range(20): a(f"v_mov_b32 v{ACC+r}, 0")
    a(f"""
    s_waitcnt vmcnt(13)
    s_barrier
    """)
    def rdA(i, s):
        for mt in range(5):
            b = AF + 20*s + 4*mt
            a(f"ds_read_b64_tr_b16 v[{b}:{b+1}], v{TRA} offset:{P3_W + i*5120 + mt*32}")
            a(f"ds_read_b64_tr_b16 v[{b+2}:{b+3}], v{TRA} offset:{P3_W + i*5120 + mt*32 + 640}")
    rdA(0, 0)
    for i in range(10):
        s = i & 1
        if i < 9:
            rdA(i + 1, s ^ 1)
            a("s_waitcnt lgkmcnt(10)")
        else:
            a("s_waitcnt lgkmcnt(0)")
        a(f"s_waitcnt vmcnt({3 + 9 - i})")
        for mt in range(5):
            b = AF + 20*s + 4*mt
            a(f"v_mfma_f32_16x16x32_bf16 v[{ACC+4*mt}:{ACC+4*mt+3}], v[{b}:{b+3}], v[{BF+4*i}:{BF+4*i+3}], v[{ACC+4*mt}:{ACC+4*mt+3}]")
    a(f"""
    s_mul_i32 s{sT0}, s{S_W}, 5120
    s_add_u32 s{sT0}, s{sT0}, {P3_RED}
    v_add_u32 v{T0}, s{sT0}, v{VL16}
    """)
    for mt in range(5):
        a(f"ds_write_b128 v{T0}, v[{ACC+4*mt}:{ACC+4*mt+3}] offset:{1024*mt}")
    a(f"""
    s_waitcnt lgkmcnt(0)
    s_barrier
    """)
    PA, PB = 24, 36
    a(f"""
    s_mul_i32 s{sT0}, s{sNT}, 5120
    s_mul_i32 s{sT1}, s{sKH}, 3072
    s_add_u32 s{sT0}, s{sT0}, s{sT1}
    s_add_u32 s{sT0}, s{sT0}, {P3_RED}
    v_add_u32 v{T0}, s{sT0}, v{VL16}
    """)
    for k in range(3):
        a(f"ds_read_b128 v[{PA+4*k}:{PA+4*k+3}], v{T0} offset:{1024*k}")
        a(f"ds_read_b128 v[{PB+4*k}:{PB+4*k+3}], v{T0} offset:{4*5120+1024*k}")
    S1, S2 = 48, 49
    a(f"""
    v_mov_b32 v{S1}, 0
    v_mov_b32 v{S2}, 0
    s_waitcnt vmcnt(0) lgkmcnt(0)
    """)
    a(f"""
    s_mul_i32 s{sT0}, s{sRB}, 40
    s_mul_i32 s{sT1}, s{sJ}, 5
    s_add_u32 s{sT0}, s{sT0}, s{sT1}
    s_mul_i32 s{sT1}, s{sKH}, 3
    s_add_u32 s{sT0}, s{sT0}, s{sT1}
    s_lshl_b32 s{sT0}, s{sT0}, 11
    s_lshr_b32 s{sT1}, s{sNT}, 1
    s_lshl_b32 s{sT1}, s{sT1}, 10
    s_add_u32 s{sT0}, s{sT0}, s{sT1}
    s_and_b32 s{sT1}, s{sNT}, 1
    s_lshl_b32 s{sT1}, s{sT1}, 8
    s_add_u32 s{sT0}, s{sT0}, s{sT1}
    s_add_u32 s45, s{sT0}, {WS_HF}
    v_lshrrev_b32 v{T1}, 1, v{Q}
    v_lshlrev_b32 v{T1}, 9, v{T1}                 ; hh'*512
    v_lshl_add_u32 v{T1}, v{N16}, 4, v{T1}
    v_and_b32 v{T2}, 1, v{Q}
    v_lshl_add_u32 v{T1}, v{T2}, 3, v{T1}
    """)
    HP = 52
    for k in range(3):
        Lsk = None
        if k == 2:
            Lsk = a.newlabel("P3_skip")
            a(f"""
            s_cmp_eq_u32 s{sKH}, 1
            s_cbranch_scc1 {Lsk}
            """)
        pa = PA + 4*k; pb = PB + 4*k
        for r in range(4): a(f"v_add_f32 v{pa+r}, v{pa+r}, v{pb+r}")
        a(f"""
        v_cvt_pk_bf16_f32 v{pb}, v{pa}, v{pa+1}
        v_cvt_pk_bf16_f32 v{pb+1}, v{pa+2}, v{pa+3}
        """)
        for hreg in range(2):
            a(f"""
            v_lshlrev_b32 v{pa+2*hreg}, 16, v{pb+hreg}
            v_and_b32 v{pa+2*hreg+1}, 0xffff0000, v{pb+hreg}
            v_lshlrev_b32 v{T3}, 16, v{XR+2*k+hreg}
            v_and_b32 v{T4}, 0xffff0000, v{XR+2*k+hreg}
            v_add_f32 v{pa+2*hreg}, v{pa+2*hreg}, v{T3}
            v_add_f32 v{pa+2*hreg+1}, v{pa+2*hreg+1}, v{T4}
            v_cvt_pk_bf16_f32 v{HP+2*k+hreg}, v{pa+2*hreg}, v{pa+2*hreg+1}
            v_lshlrev_b32 v{T3}, 16, v{HP+2*k+hreg}
            v_and_b32 v{T4}, 0xffff0000, v{HP+2*k+hreg}
            v_add_f32 v{S1}, v{S1}, v{T3}
            v_fmac_f32 v{S2}, v{T3}, v{T3}
            v_add_f32 v{S1}, v{S1}, v{T4}
            v_fmac_f32 v{S2}, v{T4}, v{T4}
            """)
        a(f"buffer_store_dwordx2 v[{HP+2*k}:{HP+2*k+1}], v{T1}, {D}, s45 offen {SM}")
        a("s_add_u32 s45, s45, 2048")
        if Lsk: a.label(Lsk)
    for reg in (S1, S2):
        a(f"""
        v_mov_b32 v{T3}, v{reg}
        s_nop 1
        v_permlane16_swap_b32 v{reg}, v{T3}
        v_add_f32 v{reg}, v{reg}, v{T3}
        v_mov_b32 v{T3}, v{reg}
        s_nop 1
        v_permlane32_swap_b32 v{reg}, v{T3}
        v_add_f32 v{reg}, v{reg}, v{T3}
        """)
    a(f"""
    s_lshl_b32 s{sT0}, s{sRB}, 4
    s_lshl_b32 s{sT1}, s{sJ}, 1
    s_add_u32 s{sT0}, s{sT0}, s{sT1}
    s_add_u32 s{sT0}, s{sT0}, s{sKH}
    s_lshl_b32 s{sT0}, s{sT0}, 9
    s_lshl_b32 s{sT1}, s{sNT}, 7
    s_add_u32 s{sT0}, s{sT0}, s{sT1}
    s_add_u32 s{sT0}, s{sT0}, {WS_ST}
    v_lshlrev_b32 v{T3}, 3, v{N16}
    s_mov_b64 exec, 0xffff
    buffer_store_dwordx2 v[{S1}:{S2}], v{T3}, {D}, s{sT0} offen {SM}
    s_mov_b64 exec, -1
    """)

def p3_wo_dma(a):
    VO = 16
    voff160(a, VO, 1280)
    a(f"s_mul_i32 s46, s{sJ}, 160")
    for r in range(3):
        Ls = None
        if r == 2:
            Ls = a.newlabel("P3_nog")
            a(f"""
            s_cmp_ge_u32 s{S_W}, 4
            s_cbranch_scc1 {Ls}
            """)
        a(f"""
        s_add_u32 s47, s{S_W}, {8*r}
        s_mul_i32 s48, s47, {32*1280}
        s_add_u32 s48, s48, s46
        s_mul_i32 s47, s47, 5120
        """)
        for p in range(5):
            a(f"""
            s_add_u32 m0, s47, {P3_W + 1024*p}
            s_nop 0
            buffer_load_dwordx4 v{VO+p}, s[{S_WO}:{S_WO+3}], s48 offen lds
            """)
        if Ls: a.label(Ls)

P4_TR = 0
P4_H = 0
P4_CS = 163840 - 8*128
P4_LDS = 163840

def phase4(a, load_mod="", store_mod=""):
    LM, SM = load_mod, store_mod
    roles(a)
    sT, sCNT, sT0, sT1, sT2, sWO = 38, 39, 40, 41, 42, 43
    WFR = 96
    ACC = 16
    BF = 48
    CS = 80; SEL = 84
    VL16 = 88; VW = 89; TRA = 90
    ST = 8
    a(f"""
    s_mul_i32 s{sT}, s{sJ}, 7
    s_cmp_eq_u32 s{sJ}, 7
    s_cselect_b32 s{sT}, 48, s{sT}
    s_cmp_lt_u32 s{sJ}, 6
    s_cselect_b32 s{sCNT}, 7, 6
    s_add_u32 s{sT}, s{sT}, s{S_W}
    v_lshlrev_b32 v{VL16}, 4, v{L}
    """)
    LNOW = a.newlabel("P4_now")
    a(f"""
    s_cmp_ge_u32 s{S_W}, s{sCNT}
    s_cbranch_scc1 {LNOW}
    v_lshrrev_b32 v{T0}, 2, v{L}
    v_mul_u32_u24 v{T0}, 3456, v{T0}
    v_and_b32 v{T1}, 3, v{L}
    v_lshl_add_u32 v{VW}, v{T1}, 4, v{T0}
    s_lshl_b32 s{sWO}, s{sT}, 6
    s_mul_i32 s{sT0}, s{S_W}, 20480
    v_lshrrev_b32 v{T0}, 4, v{L}
    v_and_b32 v{T1}, 15, v{L}
    v_lshrrev_b32 v{T2}, 1, v{T0}              ; hh
    v_lshrrev_b32 v{T3}, 2, v{T1}              ; r4
    v_lshl_add_u32 v{T2}, v{T2}, 3, v{T3}
    v_lshlrev_b32 v{T2}, 6, v{T2}
    v_and_b32 v{T0}, 1, v{T0}
    v_lshl_add_u32 v{T2}, v{T0}, 5, v{T2}
    v_and_b32 v{T1}, 3, v{T1}
    v_lshl_add_u32 v{T2}, v{T1}, 3, v{T2}
    v_add_u32 v{TRA}, s{sT0}, v{T2}
    v_and_b32 v{T0}, 15, v{L}
    v_bfe_u32 v{T1}, v{L}, 4, 1
    v_cmp_eq_u32 vcc, v{T0}, v{T1}
    v_mov_b32 v{T2}, 0x3f803f80
    v_mov_b32 v{T3}, 0
    v_cndmask_b32 v{SEL}, v{T3}, v{T2}, vcc
    v_mov_b32 v{SEL+1}, v{SEL}
    v_mov_b32 v{SEL+2}, v{SEL}
    v_mov_b32 v{SEL+3}, v{SEL}
    v_mov_b32 v{CS}, 0
    v_mov_b32 v{CS+1}, 0
    v_mov_b32 v{CS+2}, 0
    v_mov_b32 v{CS+3}, 0
    """)
    for rnd in range(2):
        for i in range(20):
            a(f"""
            s_add_u32 m0, s{sT0}, {1024*i}
            s_nop 0
            buffer_load_dwordx4 v{VW}, s[{S_W1}:{S_W1+3}], s{sWO} offen lds
            s_add_u32 s{sWO}, s{sWO}, {16*3456}
            """)
        a("s_waitcnt vmcnt(0)")
        for i in range(20):
            b = WFR + 4*(20*rnd + i)
            a(f"ds_read_b64_tr_b16 v[{b}:{b+1}], v{TRA} offset:{1024*i}")
            a(f"ds_read_b64_tr_b16 v[{b+2}:{b+3}], v{TRA} offset:{1024*i+256}")
            if i % 4 == 3: a("s_waitcnt lgkmcnt(4)")
        a("s_waitcnt lgkmcnt(0)")
    for i in range(40):
        b = WFR + 4*i
        a(f"v_mfma_f32_16x16x32_bf16 v[{CS}:{CS+3}], v[{SEL}:{SEL+3}], v[{b}:{b+3}], v[{CS}:{CS+3}]")
    a(f"""
    s_lshl_b32 s{sT0}, s{S_W}, 7
    s_add_u32 s{sT0}, s{sT0}, {P4_CS}
    v_lshlrev_b32 v{T0}, 2, v{L}
    v_add_u32 v{T0}, s{sT0}, v{T0}
    s_nop 7
    s_mov_b64 exec, 0xffff
    ds_write_b32 v{T0}, v{CS}
    ds_write_b32 v{T0}, v{CS+1} offset:64
    s_mov_b64 exec, -1
    """)
    a.label(LNOW)
    a("s_barrier")
    a(f"""
    s_mul_i32 s{sT0}, s{sRB}, {80*1024}
    s_add_u32 s{sT0}, s{sT0}, {WS_HF}
    s_lshl_b32 s{sT1}, s{S_W}, 10
    s_add_u32 s{sT0}, s{sT0}, s{sT1}
    """)
    for r in range(10):
        a(f"""
        s_add_u32 m0, s{sT1}, {P4_H + 8192*r}
        s_nop 0
        buffer_load_dwordx4 v{VL16}, {D}, s{sT0} offen {LM} lds
        s_add_u32 s{sT0}, s{sT0}, 8192
        """)
    a(f"""
    s_lshl_b32 s{sT0}, s{sRB}, 13
    s_add_u32 s{sT0}, s{sT0}, {WS_ST}
    v_lshlrev_b32 v{T0}, 3, v{L}
    """)
    SP = 48
    for p in range(16):
        if p == 8: a(f"s_add_u32 s{sT0}, s{sT0}, 4096")
        a(f"buffer_load_dwordx2 v[{SP+2*p}:{SP+2*p+1}], v{T0}, {D}, s{sT0} offen offset:{512*(p%8)} {LM}")
    for r in range(32): a(f"v_mov_b32 v{ACC+r}, 0")
    a("s_waitcnt vmcnt(0)")
    for p in range(1, 16):
        a(f"v_add_f32 v{SP}, v{SP}, v{SP+2*p}")
        a(f"v_add_f32 v{SP+1}, v{SP+1}, v{SP+2*p+1}")
    MEAN = [8, 9]; RSTD = [10, 11]
    a(f"""
    v_mul_f32 v{SP}, {f32bits(1.0/640):#x}, v{SP}
    v_mul_f32 v{SP+1}, {f32bits(1.0/640):#x}, v{SP+1}
    v_fma_f32 v{SP+1}, -v{SP}, v{SP}, v{SP+1}
    v_max_f32 v{SP+1}, 0, v{SP+1}
    v_add_f32 v{SP+1}, {f32bits(1e-5):#x}, v{SP+1}
    v_rsq_f32 v{SP+1}, v{SP+1}
    v_mov_b32 v{MEAN[0]}, v{SP}
    v_mov_b32 v{MEAN[1]}, v{SP}
    v_mov_b32 v{RSTD[0]}, v{SP+1}
    v_mov_b32 v{RSTD[1]}, v{SP+1}
    s_nop 1
    v_permlane32_swap_b32 v{MEAN[0]}, v{MEAN[1]}
    v_permlane32_swap_b32 v{RSTD[0]}, v{RSTD[1]}
    s_barrier
    """)
    LSK = a.newlabel("P4_skip")
    a(f"""
    s_cmp_ge_u32 s{S_W}, s{sCNT}
    s_cbranch_scc1 {LSK}
    """)
    def rdB(ks, s):
        for nt in range(2):
            b = BF + 8*s + 4*nt
            off = (ks*2 + nt)*1024
            if off < 65536: a(f"ds_read_b128 v[{b}:{b+3}], v{VL16} offset:{P4_H + off}")
            else: a(f"ds_read_b128 v[{b}:{b+3}], v91 offset:{P4_H + off - 65536}")
    a(f"v_add_u32 v91, 0x10000, v{VL16}")
    rdB(0, 0); rdB(1, 1); rdB(2, 2)
    for ks in range(40):
        s = ks & 3
        if ks + 3 < 40:
            rdB(ks + 3, (ks + 3) & 3)
            a("s_waitcnt lgkmcnt(6)")
        else:
            a(f"s_waitcnt lgkmcnt({2*(39-ks)})")
        w = WFR + 4*ks
        for nt in range(2):
            b = BF + 8*s + 4*nt
            a(f"v_mfma_f32_32x32x16_bf16 v[{ACC+16*nt}:{ACC+16*nt+15}], v[{w}:{w+3}], v[{b}:{b+3}], v[{ACC+16*nt}:{ACC+16*nt+15}]")
    CSR = 48
    a(f"""
    s_lshl_b32 s{sT0}, s{S_W}, 7
    s_add_u32 s{sT0}, s{sT0}, {P4_CS}
    v_lshrrev_b32 v{T5}, 5, v{L}               ; hh
    v_lshlrev_b32 v{T0}, 4, v{T5}
    v_add_u32 v{T0}, s{sT0}, v{T0}
    """)
    for j in range(4):
        a(f"ds_read_b128 v[{CSR+4*j}:{CSR+4*j+3}], v{T0} offset:{32*j}")
    a(f"""
    s_mul_i32 s{sT0}, s{sRB}, 54
    s_add_u32 s{sT0}, s{sT0}, s{sT}
    s_lshl_b32 s{sT0}, s{sT0}, 12
    s_add_u32 s{sT0}, s{sT0}, {WS_H1}
    v_bfe_u32 v{T1}, v{L}, 4, 1
    v_lshlrev_b32 v{T1}, 10, v{T1}
    v_and_b32 v{T2}, 15, v{L}
    v_lshl_add_u32 v{T1}, v{T2}, 4, v{T1}
    v_lshl_add_u32 v{T1}, v{T5}, 3, v{T1}
    s_waitcnt lgkmcnt(0)
    """)
    PK = 64
    for nt in range(2):
        for r in range(16):
            acc = ACC + 16*nt + r
            a(f"v_fma_f32 v{acc}, -v{MEAN[nt]}, v{CSR+r}, v{acc}")
        for r in range(16):
            acc = ACC + 16*nt + r
            a(f"v_mul_f32 v{acc}, v{RSTD[nt]}, v{acc}")
        for r in range(16):
            acc = ACC + 16*nt + r
            a(f"v_max_f32 v{acc}, 0, v{acc}")
        for j in range(4):
            pk = PK + 8*nt + 2*j
            acc = ACC + 16*nt + 4*j
            a(f"v_cvt_pk_bf16_f32 v{pk}, v{acc}, v{acc+1}")
            a(f"v_cvt_pk_bf16_f32 v{pk+1}, v{acc+2}, v{acc+3}")
            a(f"buffer_store_dwordx2 v[{pk}:{pk+1}], v{T1}, {D}, s{sT0} offen offset:{2048*nt + 256*j} {SM}")
    a.label(LSK)

P5_TR = 0
P5_RED = 0
P5_LDS = 8*15360

def phase5(a, load_mod="", store_mod=""):
    LM, SM = load_mod, store_mod
    roles(a)
    sK0, sCNT, sT0, sT1, sT2, sWO, sHO = 38, 39, 40, 41, 42, 43, 44
    WFR = 116
    BF = 16
    ACC = 72
    VO = 10
    TRA = 15; VL16 = 112; HR = 113
    a(f"""
    s_mul_i32 s{sK0}, s{S_W}, 7
    s_cmp_eq_u32 s{S_W}, 7
    s_cselect_b32 s{sK0}, 48, s{sK0}
    s_cmp_lt_u32 s{S_W}, 6
    s_cselect_b32 s{sCNT}, 7, 6
    v_lshlrev_b32 v{VL16}, 4, v{L}
    """)
    voff160(a, VO, 1280)
    tr160_addr(a, TRA)
    a(f"""
    s_mul_i32 s{sT0}, s{S_W}, 15360
    v_add_u32 v{TRA}, s{sT0}, v{TRA}
    s_mul_i32 s{sWO}, s{sK0}, {32*1280}
    s_mul_i32 s{sT1}, s{sJ}, 160
    s_add_u32 s{sWO}, s{sWO}, s{sT1}
    """)
    for rnd, kss in enumerate(((0, 1, 2), (3, 4, 5), (6,))):
        Ls = None
        if rnd == 2:
            Ls = a.newlabel("P5_no7")
            for r in range(20): a(f"v_mov_b32 v{WFR+120+r}, 0")
            a(f"""
            s_cmp_eq_u32 s{sCNT}, 6
            s_cbranch_scc1 {Ls}
            """)
        for n_, ks in enumerate(kss):
            for p in range(5):
                a(f"""
                s_add_u32 m0, s{sT0}, {5120*n_ + 1024*p}
                s_nop 0
                buffer_load_dwordx4 v{VO+p}, s[{S_W2}:{S_W2+3}], s{sWO} offen lds
                """)
            a(f"s_add_u32 s{sWO}, s{sWO}, {32*1280}")
        a("s_waitcnt vmcnt(0)")
        for n_, ks in enumerate(kss):
            for mt in range(5):
                b = WFR + 20*ks + 4*mt
                a(f"ds_read_b64_tr_b16 v[{b}:{b+1}], v{TRA} offset:{5120*n_ + 32*mt}")
                a(f"ds_read_b64_tr_b16 v[{b+2}:{b+3}], v{TRA} offset:{5120*n_ + 32*mt + 640}")
            a("s_waitcnt lgkmcnt(0)")
        if Ls: a.label(Ls)
    a("s_barrier")
    a(f"""
    s_mul_i32 s{sHO}, s{sRB}, 54
    s_add_u32 s{sHO}, s{sHO}, s{sK0}
    s_lshl_b32 s{sHO}, s{sHO}, 12
    s_add_u32 s{sHO}, s{sHO}, {WS_H1}
    s_sub_u32 s45, s{sCNT}, 1
    s_lshl_b32 s45, s45, 12
    """)
    def ldB(nt, s):
        for ks in range(7):
            b = BF + 28*s + 4*ks
            if ks < 6:
                a(f"s_add_u32 s{sT1}, s{sHO}, {4096*ks + 1024*nt}")
            else:
                a(f"s_add_u32 s{sT1}, s{sHO}, s45\ns_add_u32 s{sT1}, s{sT1}, {1024*nt}")
            a(f"buffer_load_dwordx4 v[{b}:{b+3}], v{VL16}, {D}, s{sT1} offen {LM}")
    N16, Q = 8, 9
    a(f"""
    v_and_b32 v{N16}, 15, v{L}
    v_lshrrev_b32 v{Q}, 4, v{L}
    """)
    ldB(0, 0)
    a(f"""
    s_mul_i32 s46, s{sRB}, 40
    s_mul_i32 s{sT1}, s{sJ}, 5
    s_add_u32 s46, s46, s{sT1}
    s_add_u32 s46, s46, s{S_W}
    s_lshl_b32 s46, s46, 11
    s_add_u32 s46, s46, {WS_HF}
    v_lshrrev_b32 v{T1}, 1, v{Q}
    v_lshlrev_b32 v{T1}, 9, v{T1}
    v_lshl_add_u32 v{T1}, v{N16}, 4, v{T1}
    v_and_b32 v{T2}, 1, v{Q}
    v_lshl_add_u32 v113, v{T2}, 3, v{T1}
    s_lshl_b32 s47, s{sRB}, 6
    s_mul_i32 s47, s47, 1280
    s_mul_i32 s{sT1}, s{sJ}, 160
    s_add_u32 s47, s47, s{sT1}
    s_lshl_b32 s{sT1}, s{S_W}, 5
    s_add_u32 s47, s47, s{sT1}
    v_mul_u32_u24 v{T1}, 1280, v{N16}
    v_lshl_add_u32 v7, v{Q}, 3, v{T1}
    s_mul_i32 s48, s{S_W}, 5120
    """)
    for nt in range(4):
        s = nt & 1
        if nt < 3:
            ldB(nt + 1, s ^ 1)
            a("s_waitcnt vmcnt(7)")
        else:
            a("s_waitcnt vmcnt(0)")
        acc = ACC + 20*s
        for ks in range(7):
            b = BF + 28*s + 4*ks
            for mt in range(5):
                w = WFR + 20*ks + 4*mt
                c = "0" if ks == 0 else f"v[{acc+4*mt}:{acc+4*mt+3}]"
                a(f"v_mfma_f32_16x16x32_bf16 v[{acc+4*mt}:{acc+4*mt+3}], v[{w}:{w+3}], v[{b}:{b+3}], {c}")
        a(f"""
        s_add_u32 s{sT1}, s48, {P5_RED + s*40960}
        v_add_u32 v{T0}, s{sT1}, v{VL16}
        """)
        for mt in range(5):
            a(f"ds_write_b128 v{T0}, v[{acc+4*mt}:{acc+4*mt+3}] offset:{1024*mt}")
        a(f"""
        s_waitcnt lgkmcnt(0)
        s_barrier
        """)
        Lr = a.newlabel("P5_nored")
        a(f"""
        s_cmp_ge_u32 s{S_W}, 5
        s_cbranch_scc1 {Lr}
        s_lshl_b32 s{sT1}, s{S_W}, 10
        s_add_u32 s{sT1}, s{sT1}, {P5_RED + s*40960}
        v_add_u32 v{T0}, s{sT1}, v{VL16}
        """)
        a(f"""
        s_add_u32 s{sT1}, s46, {(nt >> 1)*1024 + (nt & 1)*256}
        buffer_load_dwordx2 v[114:115], v113, {D}, s{sT1} offen {LM}
        """)
        RB = acc
        for half in range(2):
            for p in range(4):
                a(f"ds_read_b128 v[{RB+4*p}:{RB+4*p+3}], v{T0} offset:{5120*(4*half+p)}")
            a("s_waitcnt lgkmcnt(0)")
            if half == 0:
                for r in range(4):
                    a(f"v_add_f32 v{RB+r}, v{RB+r}, v{RB+4+r}")
                    a(f"v_add_f32 v{RB+8+r}, v{RB+8+r}, v{RB+12+r}")
                    a(f"v_add_f32 v{RB+16+r}, v{RB+r}, v{RB+8+r}")
            else:
                for r in range(4):
                    a(f"v_add_f32 v{RB+r}, v{RB+r}, v{RB+4+r}")
                    a(f"v_add_f32 v{RB+8+r}, v{RB+8+r}, v{RB+12+r}")
                    a(f"v_add_f32 v{RB+r}, v{RB+r}, v{RB+8+r}")
                    a(f"v_add_f32 v{RB+r}, v{RB+r}, v{RB+16+r}")
        a(f"""
        v_cvt_pk_bf16_f32 v{RB+4}, v{RB}, v{RB+1}
        v_cvt_pk_bf16_f32 v{RB+5}, v{RB+2}, v{RB+3}
        s_waitcnt vmcnt(0)
        """)
        for hreg in range(2):
            a(f"""
            v_lshlrev_b32 v{RB+8}, 16, v{RB+4+hreg}
            v_and_b32 v{RB+9}, 0xffff0000, v{RB+4+hreg}
            v_lshlrev_b32 v{RB+10}, 16, v{114+hreg}
            v_and_b32 v{RB+11}, 0xffff0000, v{114+hreg}
            v_add_f32 v{RB+8}, v{RB+8}, v{RB+10}
            v_add_f32 v{RB+9}, v{RB+9}, v{RB+11}
            v_cvt_pk_bf16_f32 v{RB+12+hreg}, v{RB+8}, v{RB+9}
            """)
        a(f"""
        s_add_u32 s{sT1}, s47, {nt*16*1280}
        buffer_store_dwordx2 v[{RB+12}:{RB+13}], v7, s[{S_OUT}:{S_OUT+3}], s{sT1} offen
        """)
        a.label(Lr)
```

```python
import sys, os
sys.path.insert(0, os.path.dirname(os.path.abspath(__file__)))
from common import *
import p1, p2
PROF = os.environ.get("PROF", "0") == "1"
NAME = "sequential_preLN__softmax_full_mha__dense_activation_relu__prompt"
HEADER = """; Kernarg layout for this problem (72 bytes, ptrs only, base s[0:1]):
"""
def build_multi(phases, path):
    launches = []; body = []; descs = []
    for name, fn, lds in phases:
        a = Asm()
        end = f"L_end_{name}"
        prologue(a, end)
        if PROF: stamp_start(a)
        fn(a)
        if name.startswith("p5"):
            Le = a.newlabel("epoch")
            a(f"""
            s_or_b32 s60, s2, s{S_W}
            s_cmp_eq_u32 s60, 0
            s_cbranch_scc0 {Le}
            v_mov_b32 v2, s{S_TAG}
            v_mov_b32 v3, 0
            s_mov_b64 exec, 1
            buffer_store_dword v2, v3, s[{S_WS}:{S_WS+3}], 0 offen offset:{WS_EPOCH}
            s_mov_b64 exec, -1
            """)
            a.label(Le)
        if PROF:
            a("s_waitcnt vmcnt(0)")
            stamp(a, len(launches))
        a.label(end)
        a("s_endpgm")
        lines, n = fix_hazards(a.lines)
        print(f"{name}: {len(lines)} lines, {n} hazard nops inserted", file=sys.stderr)
        body.append(kernel_header(name) + render(lines))
        descs.append(kernel_desc(name))
        launches.append(f"; @launch kernel={name} grid=(256,1,1) block=(512,1,1) lds={lds}")
    s = HEADER + "\n".join(launches) + "\n" + '.amdgcn_target "amdgcn-amd-amdhsa--gfx950"\n.text\n' + "".join(body)
    s += '.section .rodata,"a"\n' + "".join(".p2align 6\n" + d for d in descs)
    open(path, "w").write(s)

if __name__ == "__main__":
    phases = [("p1_kernel", p1.phase1, p1.P1_LDS), ("p2_kernel", p2.phase2, p2.P2_LDS)]
    try:
        import p3
        phases += [("p3_kernel", p3.phase3, p3.P3_LDS), ("p4_kernel", p3.phase4, p3.P4_LDS), ("p5_kernel", p3.phase5, p3.P5_LDS)]
    except ImportError:
        pass
    out = sys.argv[1] if len(sys.argv) > 1 else "multi.s"
    build_multi(phases, out)
```
